```python
import torch

def _softmax(x, axis=-1):
    return torch.softmax(x, dim=axis)
def _gelu(x):
    return torch.nn.functional.gelu(x, approximate="tanh")
def _silu(x):
    return torch.nn.functional.silu(x)
def _sigmoid(x):
    return torch.sigmoid(x)
def _layernorm(x, axis=-1, eps=1e-5):
    m = x.mean(dim=axis, keepdim=True)
    v = x.var(dim=axis, keepdim=True, unbiased=False)
    return (x - m) / torch.sqrt(v + eps)
def _scatter_add(tgt, idx, src, axis=0):
    return tgt.clone().index_add_(axis, idx, src)
def _segment_sum(src, seg, n):
    out = torch.zeros((n,) + src.shape[1:], dtype=src.dtype)
    return out.index_add_(0, seg, src)
def _pad(x, pw):
    flat = tuple(v for pair in reversed(pw) for v in pair)
    return torch.nn.functional.pad(x, flat)

kernel_name = 'standalone__mha_softmax__near_ridge'

def setup_inputs():

    _w = (lambda a: (lambda t: t.to(torch.bfloat16) if t.is_floating_point() else t)(torch.as_tensor(a)))
    B, H, Sq, Sk, D = 8, 32, 496, 512, 128
    return {
        "q": _w((lambda *s: torch.randn(*s, dtype=torch.bfloat16) * 0.8)(B, H, Sq, D)),
        "k": _w((lambda *s: torch.randn(*s, dtype=torch.bfloat16) * 0.8)(B, H, Sk, D)),
        "v": _w((lambda *s: torch.randn(*s, dtype=torch.bfloat16) * 0.05)(B, H, Sk, D)),
    }

def reference(q, k, v):
    scale = q.shape[-1] ** -0.5
    scores = torch.einsum("bhqd,bhkd->bhqk", q, k) * scale
    p = _softmax(scores, axis=-1)
    return torch.einsum("bhqk,bhkd->bhqd", p, v)
```

```python
import re
class I:
    __slots__=('t','k','d','u','tag','wait','c','srcc')
    def __init__(s,t,k,d=(),u=(),tag=None,wait=None,c=None,srcc=()):
        s.t=t; s.k=k; s.d=frozenset(d); s.u=frozenset(u); s.tag=tag; s.wait=wait; s.srcc=frozenset(srcc)
        s.c = c if c is not None else {'mfma':8,'trans':8,'valu':4,'perm':4,'ds':4,'vld':8,'dma':8,'vst':8,'salu':2,'other':2}.get(k,4)
def R(a,n=1): return list(range(a,a+n))
def vr(a,n=1): return f"v{a}" if n==1 else f"v[{a}:{a+n-1}]"
def mfma(D,A,B,C=None):
    c = '0' if C is None else vr(C,16)
    cu = [] if C is None else R(C,16)
    return I(f"v_mfma_f32_32x32x16_bf16 {vr(D,16)}, {vr(A,4)}, {vr(B,4)}, {c}",'mfma',R(D,16),R(A,4)+R(B,4)+cu,srcc=cu)
def valu(t,d,u): return I(t,'valu',d,u)
def trans(t,d,u): return I(t,'trans',d,u)
def salu(t): return I(t,'salu')
def raw(t): return I(t,'other')

def insert_waits(ins):
    out=[]; lg=[]; vm=[]
    for x in ins:
        need_lg=None; need_vm=None
        touched = x.d | x.u
        if x.k=='reset':
            lg=[]; vm=[]; out.append(x); continue
        for i,(regs,tag) in enumerate(lg):
            if regs & touched: need_lg = len(lg)-1-i
        for i,(regs,tag) in enumerate(vm):
            if regs & touched or (x.wait and tag in x.wait): need_vm = len(vm)-1-i
        if x.wait and 'LGALL' in x.wait and lg: need_lg=0
        if x.wait and 'VMALL' in x.wait and vm: need_vm=0
        parts=[]
        if need_vm is not None:
            need_vm=min(need_vm,63); parts.append(f"vmcnt({need_vm})"); vm=vm[len(vm)-need_vm:] if need_vm else []
        if need_lg is not None:
            need_lg=min(need_lg,15); parts.append(f"lgkmcnt({need_lg})"); lg=lg[len(lg)-need_lg:] if need_lg else []
        if parts: out.append(I("s_waitcnt "+" ".join(parts),'wait'))
        out.append(x)
        if x.k=='ds': lg.append((x.d,x.tag))
        elif x.k=='vld': vm.append((x.d,x.tag))
        elif x.k in('dma','vst'): vm.append((frozenset(),x.tag))
        assert len(vm)<=63, "vmcnt overflow"
    return out

def states(x):
    if x.k in ('label','reset','comment'): return 0
    m=re.match(r's_nop (\d+)',x.t)
    return int(m.group(1))+1 if m else 1

def fix_hazards(ins, verbose=False):
    out=[]; nn=0
    VAL=('valu','trans','perm')
    for x in ins:
        need=0; dist=0
        for p in reversed(out):
            if dist>=20: break
            req=0
            if p.k=='mfma':
                if x.k=='mfma':
                    if (p.d & (x.u - x.srcc)): req=12
                    elif (p.d & x.srcc) and p.d!=x.srcc: req=10
                    elif (p.d & x.d) and not (p.d & x.srcc): req=12
                elif (p.d & (x.u|x.d)): req=12
                if x.k in VAL and (p.srcc & x.d): req=max(req,7)
            elif p.k in VAL:
                if x.k=='mfma' and (p.d & x.u): req=2
                if x.k=='perm' and (p.d & (x.u|x.d)): req=2
                if p.k=='trans' and x.k in ('valu','perm') and (p.d & x.u): req=max(req,1)
                if x.k=='rfl' and (p.d & x.u): req=max(req,1)
            elif p.k=='vst':
                if (p.u & x.d): req=2
            elif p.k=='salu':
                if 'm0' in p.t.split(',')[0] and x.k=='dma': req=1
            need=max(need,req-dist)
            dist+=states(p)
        if need>0:
            nn+=1
            if verbose: print("nop",need,"before",x.t)
            out.append(I(f"s_nop {need-1}",'other'))
        out.append(x)
    return out,nn

def weave(mf, fill, lead=0):
    n=len(mf)
    gaps=[[] for _ in range(n+1)]
    total=sum(f[0].c for f in fill)
    per = total/ max(n,1)
    cum=0; g=0
    his=[f[2] for f in fill]
    for i in range(len(fill)-2,-1,-1): his[i]=min(his[i],his[i+1])
    for i,(x,lo,hi) in enumerate(fill):
        want = int((cum + x.c*0.5)/per)+1-lead if per>0 else 1
        want=max(want,lo,g); want=min(want,his[i],n)
        assert want>=lo and want>=g, (x.t,lo,hi,g,want)
        g=want; gaps[g].append(x); cum+=x.c
    out=[]
    for g in range(n+1):
        if g>0: out.append(mf[g-1])
        out+=gaps[g]
    return out

def merge(*streams):
    items=[]
    for si,(st,w0,w1) in enumerate(streams):
        tot=sum(f[0].c for f in st) or 1
        cum=0
        for j,f in enumerate(st):
            pos = w0+(w1-w0)*(cum+f[0].c*0.5)/tot
            pos=max(pos,f[1]); pos=min(pos,f[2]+0.99)
            items.append([pos,si,j,f]); cum+=f[0].c
        last=-1
        for it in items:
            if it[1]==si:
                it[0]=max(it[0],last); last=it[0]
    items.sort(key=lambda z:(z[0],z[1],z[2]))
    return items
def place(mf, streams):
    n=len(mf); gaps=[[] for _ in range(n+1)]
    for pos,si,j,f in merge(*streams):
        g=min(max(int(pos),0),n)
        assert f[1]<=g<=max(f[2],f[1]), (f[0].t,f[1],f[2],g)
        gaps[g].append(f[0])
    out=[]
    for g in range(n+1):
        if g>0: out.append(mf[g-1])
        out+=gaps[g]
    return out
```

```python
import sys, math, struct, json
from asmlib import *
NAME="standalone__mha_softmax__near_ridge"
def f2u(x): return struct.unpack('<I',struct.pack('<f',x))[0]
DEF=dict(stamps=0, PD=6, BOFF=4, early=5, prio=0, qn0=3, qn1=11, st0=18, st1=20, nt_st=0, nt_ld=0, share=1, slow=1, force_slow=0, pkadd=0, dmaspread=1.0)
def gen(**kw):
    o=dict(DEF); o.update(kw)
    O=0; QA=64; QB=96; S=[128,144]; P=[160,168]; FR=176; NFR=8
    KAD=208; VAD=216; DK=220; DV=221; QO=[222,223]; MC=224; L=[[226,227],[228,229]]; RI=230; T=232
    sQ=[8,12]; sK=16; sV=20; sO=[24,28]; sC=32; sW=33; sOFF=34; sFLAG=36; sST=40
    pre=[]
    a=pre.append
    a(raw("s_cmp_ge_u32 s2, 256")); a(raw("s_cbranch_scc1 L_end"))
    a(raw("s_load_dwordx4 s[40:43], s[0:1], 0")); a(raw("s_load_dwordx4 s[44:47], s[0:1], 16")); a(raw("s_load_dwordx2 s[4:5], s[0:1], 40"))
    if o['stamps']: a(raw("s_memtime s[60:61]"))
    a(valu(f"v_and_b32 v{T}, 63, v0",[T],[0]))
    a(valu(f"v_lshrrev_b32 v{T+1}, 6, v0",[T+1],[0]))
    a(raw("s_nop 0"))
    a(I(f"v_readfirstlane_b32 s{sW}, v{T+1}",'rfl',[],[T+1]))
    if o['share']:
        a(salu("s_and_b32 s3, s2, 7")); a(salu("s_lshr_b32 s6, s2, 4")); a(salu("s_lshl_b32 s3, s3, 4")); a(salu("s_add_u32 s3, s3, s6"))
        a(salu("s_lshr_b32 s7, s2, 3")); a(salu("s_and_b32 s7, s7, 1"))
    else:
        a(salu("s_lshr_b32 s3, s2, 1")); a(salu("s_and_b32 s7, s2, 1"))
    l=T; h=T+2; l16=T+3; l32=T+4; t0=T+5; t1=T+6
    a(valu(f"v_lshrrev_b32 v{h}, 5, v{l}",[h],[l])); a(valu(f"v_and_b32 v{l16}, 15, v{l}",[l16],[l])); a(valu(f"v_and_b32 v{l32}, 31, v{l}",[l32],[l]))
    a(valu(f"v_lshrrev_b32 v{t0}, 4, v0",[t0],[0]))
    a(valu(f"v_and_b32 v{t1}, 15, v{t0}",[t1],[t0])); a(valu(f"v_xor_b32 v{t1}, v{t1}, v{l16}",[t1],[t1,l16]))
    a(valu(f"v_lshlrev_b32 v{t1}, 4, v{t1}",[t1],[t1])); a(valu(f"v_lshl_add_u32 v{DK}, v{t0}, 8, v{t1}",[DK],[t0,t1]))
    a(valu(f"v_and_b32 v{t1}, 3, v{t0}",[t1],[t0])); a(valu(f"v_lshlrev_b32 v{t1}, 2, v{t1}",[t1],[t1])); a(valu(f"v_xor_b32 v{t1}, v{t1}, v{l16}",[t1],[t1,l16]))
    a(valu(f"v_lshlrev_b32 v{t1}, 4, v{t1}",[t1],[t1])); a(valu(f"v_lshl_add_u32 v{DV}, v{t0}, 8, v{t1}",[DV],[t0,t1]))
    a(valu(f"v_lshlrev_b32 v{t0}, 5, v{T+1}",[t0],[T+1])); a(valu(f"v_add_u32 v{t0}, v{t0}, v{l32}",[t0],[t0,l32]))
    a(valu(f"v_lshlrev_b32 v{t0}, 8, v{t0}",[t0],[t0])); a(valu(f"v_lshl_add_u32 v{t0}, v{h}, 4, v{t0}",[t0],[h,t0]))
    a(salu("s_lshl_b32 s6, s7, 16")); a(valu(f"v_add_u32 v{QO[0]}, s6, v{t0}",[QO[0]],[t0]))
    a(salu("s_xor_b32 s6, s6, 0x10000")); a(valu(f"v_add_u32 v{QO[1]}, s6, v{t0}",[QO[1]],[t0]))
    a(raw("s_waitcnt lgkmcnt(0)"))
    a(salu("s_mul_i32 s6, s3, 0x40000"))
    for sr,p in ((sK,42),(sV,44)):
        a(salu(f"s_add_u32 s{sr}, s{p}, s6")); a(salu(f"s_addc_u32 s{sr+1}, s{p+1}, 0")); a(salu(f"s_mov_b32 s{sr+2}, 0x40000")); a(salu(f"s_mov_b32 s{sr+3}, 0x20000"))
    a(salu(f"s_lshl_b32 s{sW}, s{sW}, 10"))
    nt = " nt" if o['nt_ld'] else ""
    def dma(kind,U):
        base=(0 if kind=='K' else 65536)+(U%8)*8192
        return [salu(f"s_add_u32 m0, s{sW}, {base}"), salu(f"s_mov_b32 s{sOFF}, {U*8192}"),
                I(f"buffer_load_dwordx4 v{DK if kind=='K' else DV}, s[{sK if kind=='K' else sV}:{(sK if kind=='K' else sV)+3}], s{sOFF} offen lds",'dma',[],[DK,DV],tag=(kind,U))]
    pre+=dma('K',0)
    a(salu("s_mul_i32 s6, s3, 253952"))
    for srs,p in ((sQ,40),(sO,46)):
        a(salu(f"s_add_u32 s{srs[0]}, s{p}, s6")); a(salu(f"s_addc_u32 s{srs[0]+1}, s{p+1}, 0")); a(salu(f"s_mov_b32 s{srs[0]+2}, 126976")); a(salu(f"s_mov_b32 s{srs[0]+3}, 0x20000"))
        a(salu(f"s_add_u32 s{srs[1]}, s{srs[0]}, 126976")); a(salu(f"s_addc_u32 s{srs[1]+1}, s{srs[0]+1}, 0")); a(salu(f"s_mov_b32 s{srs[1]+2}, 126976")); a(salu(f"s_mov_b32 s{srs[1]+3}, 0x20000"))
    def qload(p,s):
        d=(QA,QB)[p]+4*s
        return I(f"buffer_load_dwordx4 {vr(d,4)}, v{QO[p]}, s[{sQ[p]}:{sQ[p]+3}], 0 offen offset:{s*32}{nt}",'vld',R(d,4),[QO[p]])
    for s in range(8): a(qload(0,s))
    issued={('K',0)}
    for U in range(1,9):
        for kd,u in (('K',U),('V',U-1)):
            if u<8: pre+=dma(kd,u); issued.add((kd,u))
    for s in range(8):
        a(valu(f"v_add_u32 v{t0}, {2*s}, v{h}",[t0],[h])); a(valu(f"v_xor_b32 v{t0}, v{t0}, v{l16}",[t0],[t0,l16]))
        a(valu(f"v_lshlrev_b32 v{t0}, 4, v{t0}",[t0],[t0])); a(valu(f"v_lshl_add_u32 v{KAD+s}, v{l32}, 8, v{t0}",[KAD+s],[l32,t0]))
    q4=T+7; t2=T+8
    a(valu(f"v_lshrrev_b32 v{q4}, 2, v{l16}",[q4],[l16]))
    a(valu(f"v_lshl_add_u32 v{t0}, v{h}, 2, v{q4}",[t0],[h,q4])); a(valu(f"v_lshlrev_b32 v{t0}, 8, v{t0}",[t0],[t0]))
    a(valu(f"v_and_b32 v{t1}, 16, v{l}",[t1],[l])); a(valu(f"v_lshl_add_u32 v{t0}, v{t1}, 1, v{t0}",[t0],[t1,t0]))
    a(valu(f"v_and_b32 v{t1}, 3, v{l}",[t1],[l])); a(valu(f"v_lshl_add_u32 v{t0}, v{t1}, 3, v{t0}",[t0],[t1,t0]))
    a(valu(f"v_add_u32 v{t0}, 0x10000, v{t0}",[t0],[t0]))
    for d in range(4):
        a(valu(f"v_xor_b32 v{t2}, {d}, v{q4}",[t2],[q4])); a(valu(f"v_lshl_add_u32 v{VAD+d}, v{t2}, 6, v{t0}",[VAD+d],[t2,t0]))
    c=(128**-0.5)*math.log2(math.e)
    a(salu(f"s_mov_b32 s{sC}, 0x{f2u(c):08x}")); a(salu(f"s_mov_b64 s[{sFLAG}:{sFLAG+1}], 0")); a(salu(f"s_mov_b64 s[{sFLAG+2}:{sFLAG+3}], 0"))
    for p in range(2):
        for x in L[p]: a(valu(f"v_mov_b32 v{x}, 0",[x],[]))
    if o['prio']:
        a(salu(f"s_cmp_ge_u32 s{sW}, 4096")); a(raw("s_cbranch_scc0 L_prio")); a(raw("s_setprio 1")); a(I("L_prio:",'label'))
    mf=[]; frag=[]; start={}; pvstart={}; NU=32
    def addm(D,B,C,fr):
        i=len(mf); fb=FR+4*(i%NFR); mf.append(mfma(D,fb,B,C)); frag.append((fb,fr))
    for U in range(-1,NU+1):
        start[U]=len(mf)
        if U+1<NU:
            q=(QA,QB)[(U+1)//16]; D=S[(U+1)%2]
            for s in range(8): addm(D,q+4*s,None if s==0 else D,('K',U+1,s))
        pvstart[U]=len(mf)
        if U-1>=0:
            for d in range(4):
                for t in range(2): addm(O+16*d,P[(U-1)%2]+4*t,None if ((U-1)%16==0 and t==0) else O+16*d,('V',U-1,d,t))
    start[NU+1]=len(mf); NM=len(mf)
    bslots=[U for U in range(0,NU) if U<o['early'] or (U-o['early'])%2==1]
    bpos=[0]+[start[U]-o['BOFF'] for U in bslots]
    streams=[]
    rd=[]; BIG=10**9
    for i,(fb,fr) in enumerate(frag):
        g=max(i-o['PD'],0)
        if fr[0]=='K' and (fr[1]-1) in bslots: g=max(g,start[fr[1]-1]-o['BOFF'])
        off=(fr[1]%8)*8192
        if fr[0]=='K': rd.append((g,I(f"ds_read_b128 {vr(fb,4)}, v{KAD+fr[2]} offset:{off}",'ds',R(fb,4),[KAD+fr[2]],tag=fr[:2])))
        else:
            for u2 in range(2): rd.append((g,I(f"ds_read_b64_tr_b16 {vr(fb+2*u2,2)}, v{VAD+fr[2]} offset:{off+(16*fr[3]+8*u2)*256}",'ds',R(fb+2*u2,2),[VAD+fr[2]],tag=fr[:2])))
    gaps=[[] for _ in range(NM+1)]
    def put(pos,x): gaps[min(int(pos),NM)].append((pos-int(pos) if pos<NM else pos-NM,len(gaps[min(int(pos),NM)]),x))
    firstread={}; lastread={}
    for g,x in rd:
        put(g+0.05,x); firstread.setdefault(x.tag,g); lastread[x.tag]=g
    for bi,b in enumerate(bpos):
        nb=bpos[bi+1] if bi+1<len(bpos) else BIG
        w={t for t,g in firstread.items() if b<=g<nb}|{'LGALL'}
        put(b+0.01,I("s_barrier",'other',wait=w))
        todo=[]
        for X in range(NU):
            for kd in 'KV':
                if (kd,X) not in issued and lastread[(kd,X-8)]<b: todo.append((firstread[(kd,X)],kd,X))
        todo.sort()
        span=(min(nb,NM)-b)*o['dmaspread']
        for j,(_,kd,X) in enumerate(todo):
            issued.add((kd,X)); pos=b+1+int(span*j/len(todo))+0.5
            for k,x in enumerate(dma(kd,X)): put(pos+0.01*k,x)
    assert len(issued)==2*NU
    def spread(lst,w0,w1):
        tot=sum(x.c for x in lst); cum=0
        for x in lst:
            pos=w0+(w1-w0)*(cum+0.5*x.c)/tot; cum+=x.c
            f=pos-int(pos); put(int(pos)+0.1+0.85*f,x)
    for U in range(NU):
        s=S[U%2]; p=U//16; lst=[]
        w0=start[U]; w1=start[U+1]
        if U%16==0:
            m=[valu(f"v_max3_f32 v{T}, v{s}, v{s+1}, v{s+2}",[T],[s,s+1,s+2]), valu(f"v_max3_f32 v{T+1}, v{s+3}, v{s+4}, v{s+5}",[T+1],[s+3,s+4,s+5])]
            for k in range(6,14,4):
                m.append(valu(f"v_max3_f32 v{T}, v{T}, v{s+k}, v{s+k+1}",[T],[T,s+k,s+k+1])); m.append(valu(f"v_max3_f32 v{T+1}, v{T+1}, v{s+k+2}, v{s+k+3}",[T+1],[T+1,s+k+2,s+k+3]))
            m.append(valu(f"v_max3_f32 v{T}, v{T}, v{s+14}, v{s+15}",[T],[T,s+14,s+15])); m.append(valu(f"v_max_f32 v{T}, v{T}, v{T+1}",[T],[T,T+1]))
            m.append(valu(f"v_mov_b32 v{T+1}, v{T}",[T+1],[T])); m.append(I(f"v_permlane32_swap_b32 v{T}, v{T+1}",'perm',[T,T+1],[T,T+1]))
            m.append(valu(f"v_max_f32 v{T}, v{T}, v{T+1}",[T],[T,T+1])); m.append(valu(f"v_mul_f32 v{MC}, s{sC}, v{T}",[MC],[T]))
            if U==0: lst+=m; w0+=2
            else: spread(m,start[U]-4,start[U]-0.01) if False else lst.extend(m)
        def tail(k):
            a0,a1=s+2*k,s+2*k+1
            if o['pkadd']: r=[valu(f"v_pk_add_f32 {vr(L[p][0],2)}, {vr(L[p][0],2)}, {vr(a0,2)}",L[p],L[p]+[a0,a1])]
            else: r=[valu(f"v_add_f32 v{L[p][0]}, v{L[p][0]}, v{a0}",[L[p][0]],[L[p][0],a0]), valu(f"v_add_f32 v{L[p][1]}, v{L[p][1]}, v{a1}",[L[p][1]],[L[p][1],a1])]
            return r+[valu(f"v_cvt_pk_bf16_f32 v{P[U%2]+k}, v{a0}, v{a1}",[P[U%2]+k],[a0,a1])]
        def fm(r): return valu(f"v_fma_f32 v{r}, v{r}, s{sC}, -v{MC}",[r],[r,MC])
        lst+=[fm(s),fm(s+1)]
        for k in range(8):
            a0,a1=s+2*k,s+2*k+1
            lst.append(trans(f"v_exp_f32 v{a0}, v{a0}",[a0],[a0]))
            if k<7: lst.append(fm(a0+2))
            lst.append(trans(f"v_exp_f32 v{a1}, v{a1}",[a1],[a1]))
            if k<7: lst.append(fm(a1+2))
            if k>0: lst+=tail(k-1)
        lst+=tail(7)
        spread(lst,w0,w1-0.01)
    spread([qload(1,s) for s in range(8)],start[o['qn0']],start[o['qn1']])
    nts=" nt" if o['nt_st'] else ""
    for p in range(2):
        X=(QA,QB)[p]; Ul=16*p+16
        l0,l1=L[p]
        fin=[valu(f"v_add_f32 v{l0}, v{l0}, v{l1}",[l0],[l0,l1]), valu(f"v_mov_b32 v{l1}, v{l0}",[l1],[l0]), I(f"v_permlane32_swap_b32 v{l0}, v{l1}",'perm',[l0,l1],[l0,l1]),
             valu(f"v_add_f32 v{l0}, v{l0}, v{l1}",[l0],[l0,l1]), trans(f"v_rcp_f32 v{RI}, v{l0}",[RI],[l0]),
             valu(f"v_mov_b32 v{T+2}, 0x{f2u(2.0**(-1 if o['force_slow'] else 40)):08x}",[T+2],[]),
             valu(f"v_cmp_nlt_f32 s[{sFLAG+2*p}:{sFLAG+2*p+1}], v{l0}, v{T+2}",[],[l0,T+2])]
        spread(fin,start[Ul]+(3 if p==0 else 0),start[Ul]+(7 if p==0 else 2))
        sto=[]
        for d in range(4):
            cv=[]
            for k in range(8):
                r=O+16*d+2*k
                if p==1: cv.append(valu(f"v_pk_mul_f32 {vr(r,2)}, {vr(r,2)}, {vr(RI,2)} op_sel_hi:[1,0]",[r,r+1],[r,r+1,RI]))
                else: cv+= [valu(f"v_mul_f32 v{r}, v{r}, v{RI}",[r],[r,RI]), valu(f"v_mul_f32 v{r+1}, v{r+1}, v{RI}",[r+1],[r+1,RI])]
                if k>0: cv.append(valu(f"v_cvt_pk_bf16_f32 v{X+8*d+k-1}, v{r-2}, v{r-1}",[X+8*d+k-1],[r-2,r-1]))
            cv.append(valu(f"v_cvt_pk_bf16_f32 v{X+8*d+7}, v{O+16*d+14}, v{O+16*d+15}",[X+8*d+7],[O+16*d+14,O+16*d+15]))
            st=[]
            for g in (0,1):
                x=X+8*d+4*g
                st+=[I(f"v_permlane32_swap_b32 v{x}, v{x+2}",'perm',[x,x+2],[x,x+2]), I(f"v_permlane32_swap_b32 v{x+1}, v{x+3}",'perm',[x+1,x+3],[x+1,x+3]),
                     I(f"buffer_store_dwordx4 {vr(x,4)}, v{QO[p]}, s[{sO[p]}:{sO[p]+3}], 0 offen offset:{d*64+32*g}{nts}",'vst',[],R(x,4)+[QO[p]],tag=('O',p))]
            if p==0:
                e0=pvstart[Ul]+4+4.5*d; spread(cv,e0,e0+4.5); assert e0+4.5<=pvstart[Ul+1]+2*d+0.99; sto+=st
            else:
                e0=pvstart[Ul]+2*d+3
                for j,x in enumerate(cv+st): put(min(e0,NM)+0.2+ (d if e0>=NM else 0)+0.001*j if e0>=NM else e0+0.2+0.7*j/len(cv+st),x)
        if p==0: spread(sto,start[o['st0']],start[o['st1']])
    nst=0
    if o['stamps']:
        for U in list(range(-1,NU+1,2 if o['stamps']==1 else 1)):
            put(start[U]+0.02,raw(f"s_memtime s[{62+2*nst}:{63+2*nst}]")); nst+=1
    body=[]
    for g in range(NM+1):
        if g>0: body.append(mf[g-1])
        body+=[z[2] for z in sorted(gaps[g],key=lambda z:(z[0],z[1]))]
    post=[]
    if o['stamps']:
        post.append(raw(f"s_memtime s[{62+2*nst}:{63+2*nst}]")); nst+=1
        post.append(I("s_nop 0",'other',wait={'VMALL'}))
        post.append(raw(f"s_memtime s[{62+2*nst}:{63+2*nst}]")); nst+=1
        assert 62+2*nst<=102
        post+= [raw("s_getreg_b32 s58, hwreg(HW_REG_XCC_ID)"), raw("s_getreg_b32 s59, hwreg(HW_REG_HW_ID)"), raw("s_waitcnt lgkmcnt(0)"),
                salu("s_mov_b32 s8, s4"),salu("s_mov_b32 s9, s5"),salu("s_mov_b32 s10, 0x100000"),salu("s_mov_b32 s11, 0x20000"),
                salu("s_lshl_b32 s3, s2, 11"), salu(f"s_lshr_b32 s6, s{sW}, 2"), salu("s_add_u32 s3, s3, s6"), valu(f"v_mov_b32 v{T}, s3",[T],[]), raw("s_mov_b64 exec, 1")]
        for j in range(nst+2):
            post+=[valu(f"v_mov_b32 v{T+2}, s{58+2*j}",[T+2],[]),valu(f"v_mov_b32 v{T+3}, s{59+2*j}",[T+3],[]),
                   I(f"buffer_store_dwordx2 {vr(T+2,2)}, v{T}, s[8:11], 0 offen offset:{8*j}",'vst',[],[T,T+2,T+3])]
        post.append(raw("s_mov_b64 exec, -1"))
    slow=[]
    if o['slow'] and not o['stamps']:
        from slowpath import slowpath
        slow=slowpath(locals())
    ins=insert_waits(pre+body+post+slow)
    ins,nn=fix_hazards(ins,verbose=o.get('verbose',0))
    txt=[]
    for x in ins: txt.append(x.t if x.k=='label' else "    "+x.t)
    hdr=open('cdna_kernels/%s.s.ref'%NAME).read().split('; Override')[0]
    out=hdr+f"; @launch grid=(256,1,1) block=(512,1,1) lds=131072\n.amdgcn_target \"amdgcn-amd-amdhsa--gfx950\"\n.text\n.globl {NAME}_kernel\n.p2align 8\n.type {NAME}_kernel,@function\n{NAME}_kernel:\n"
    out+="\n".join(txt)+"\nL_end:\n    s_endpgm\n"
    out+=f""".section .rodata,"a"
.p2align 6
.amdhsa_kernel {NAME}_kernel
  .amdhsa_next_free_vgpr 256
  .amdhsa_next_free_sgpr 102
  .amdhsa_accum_offset 256
  .amdhsa_group_segment_fixed_size 0
  .amdhsa_kernarg_size 48
  .amdhsa_user_sgpr_count 2
  .amdhsa_user_sgpr_kernarg_segment_ptr 1
  .amdhsa_system_sgpr_workgroup_id_x 1
.end_amdhsa_kernel
"""
    return out,len(ins),nn
if __name__=="__main__":
    path=sys.argv[1]; kw={}
    for s in sys.argv[2:]:
        k,v=s.split('='); kw[k]=float(v) if '.' in v else int(v)
    out,n,nn=gen(**kw); open(path,'w').write(out); print(path,"insts",n,"nops",nn)
```

```python
import re
class I:
    __slots__=('t','k','d','u','tag','wait','c','srcc')
    def __init__(s,t,k,d=(),u=(),tag=None,wait=None,c=None,srcc=()):
        s.t=t; s.k=k; s.d=frozenset(d); s.u=frozenset(u); s.tag=tag; s.wait=wait; s.srcc=frozenset(srcc)
        s.c = c if c is not None else {'mfma':8,'trans':8,'valu':4,'perm':4,'ds':4,'vld':8,'dma':8,'vst':8,'salu':2,'other':2}.get(k,4)
def R(a,n=1): return list(range(a,a+n))
def vr(a,n=1): return f"v{a}" if n==1 else f"v[{a}:{a+n-1}]"
def mfma(D,A,B,C=None):
    c = '0' if C is None else vr(C,16)
    cu = [] if C is None else R(C,16)
    return I(f"v_mfma_f32_32x32x16_bf16 {vr(D,16)}, {vr(A,4)}, {vr(B,4)}, {c}",'mfma',R(D,16),R(A,4)+R(B,4)+cu,srcc=cu)
def mfma16(D,A,B,C=None):
    c = '0' if C is None else vr(C,4)
    cu = [] if C is None else R(C,4)
    return I(f"v_mfma_f32_16x16x32_bf16 {vr(D,4)}, {vr(A,4)}, {vr(B,4)}, {c}",'mfma',R(D,4),R(A,4)+R(B,4)+cu,srcc=cu)
def valu(t,d,u): return I(t,'valu',d,u)
def trans(t,d,u): return I(t,'trans',d,u)
def salu(t): return I(t,'salu')
def raw(t): return I(t,'other')

def insert_waits(ins):
    out=[]; lg=[]; vm=[]; seen=set()
    for x in ins:
        if x.k=='dma': seen.add(x.tag)
        if x.wait:
            for t in x.wait: assert isinstance(t,str) or t in seen, ('barrier waits on unissued dma',t)
        need_lg=None; need_vm=None
        touched = x.d | x.u
        if x.k=='reset':
            lg=[]; vm=[]; out.append(x); continue
        for i,(regs,tag) in enumerate(lg):
            if regs & touched: need_lg = len(lg)-1-i
        for i,(regs,tag) in enumerate(vm):
            if regs & touched or (x.wait and tag in x.wait): need_vm = len(vm)-1-i
        if x.wait and 'LGALL' in x.wait and lg: need_lg=0
        if x.wait and 'VMALL' in x.wait and vm: need_vm=0
        parts=[]
        if x.k=='cbar':
            if need_vm is not None:
                assert need_vm<=63
                out.append(I(f"s_waitcnt vmcnt({need_vm})",'wait'))
            out.append(x); continue
        if need_vm is not None:
            need_vm=min(need_vm,63); parts.append(f"vmcnt({need_vm})"); vm=vm[len(vm)-need_vm:] if need_vm else []
        if need_lg is not None:
            need_lg=min(need_lg,15); parts.append(f"lgkmcnt({need_lg})"); lg=lg[len(lg)-need_lg:] if need_lg else []
        if parts: out.append(I("s_waitcnt "+" ".join(parts),'wait'))
        out.append(x)
        if x.k=='ds': lg.append((x.d,x.tag))
        elif x.k=='vld': vm.append((x.d,x.tag))
        elif x.k in('dma','vst'): vm.append((frozenset(),x.tag))
    return out

def states(x):
    if x.k in ('label','reset','comment'): return 0
    m=re.match(r's_nop (\d+)',x.t)
    return int(m.group(1))+1 if m else 1

def fix_hazards(ins, verbose=False):
    out=[]; nn=0
    VAL=('valu','trans','perm','dot')
    for x in ins:
        need=0; dist=0
        for p in reversed(out):
            if dist>=20: break
            req=0
            if p.k=='mfma':
                big=len(p.d)==16; r1=12 if big else 8
                if x.k=='mfma':
                    if (p.d & (x.u - x.srcc)): req=r1
                    elif (p.d & x.srcc) and p.d!=x.srcc: req=r1-2
                    elif (p.d & x.d) and not (p.d & x.srcc): req=r1
                elif (p.d & (x.u|x.d)): req=r1
                if x.k in VAL and (p.srcc & x.d): req=max(req,7 if big else 3)
            elif p.k in VAL:
                if x.k=='mfma' and (p.d & x.u): req=2
                if x.k=='perm' and (p.d & (x.u|x.d)): req=2
                if p.k=='trans' and x.k in ('valu','perm') and (p.d & x.u): req=max(req,1)
                if p.k=='dot' and (p.d & (x.u|x.d)): req=max(req,3)
                if x.k=='rfl' and (p.d & x.u): req=max(req,1)
            elif p.k=='vst':
                if (p.u & x.d): req=2
            elif p.k=='salu':
                if 'm0' in p.t.split(',')[0] and x.k=='dma': req=1
            need=max(need,req-dist)
            dist+=states(p)
        if need>0:
            nn+=1
            if verbose: print("nop",need,"before",x.t)
            out.append(I(f"s_nop {need-1}",'other'))
        out.append(x)
    return out,nn

def weave(mf, fill, lead=0):
    n=len(mf)
    gaps=[[] for _ in range(n+1)]
    total=sum(f[0].c for f in fill)
    per = total/ max(n,1)
    cum=0; g=0
    his=[f[2] for f in fill]
    for i in range(len(fill)-2,-1,-1): his[i]=min(his[i],his[i+1])
    for i,(x,lo,hi) in enumerate(fill):
        want = int((cum + x.c*0.5)/per)+1-lead if per>0 else 1
        want=max(want,lo,g); want=min(want,his[i],n)
        assert want>=lo and want>=g, (x.t,lo,hi,g,want)
        g=want; gaps[g].append(x); cum+=x.c
    out=[]
    for g in range(n+1):
        if g>0: out.append(mf[g-1])
        out+=gaps[g]
    return out

def merge(*streams):
    items=[]
    for si,(st,w0,w1) in enumerate(streams):
        tot=sum(f[0].c for f in st) or 1
        cum=0
        for j,f in enumerate(st):
            pos = w0+(w1-w0)*(cum+f[0].c*0.5)/tot
            pos=max(pos,f[1]); pos=min(pos,f[2]+0.99)
            items.append([pos,si,j,f]); cum+=f[0].c
        last=-1
        for it in items:
            if it[1]==si:
                it[0]=max(it[0],last); last=it[0]
    items.sort(key=lambda z:(z[0],z[1],z[2]))
    return items
def place(mf, streams):
    n=len(mf); gaps=[[] for _ in range(n+1)]
    for pos,si,j,f in merge(*streams):
        g=min(max(int(pos),0),n)
        assert f[1]<=g<=max(f[2],f[1]), (f[0].t,f[1],f[2],g)
        gaps[g].append(f[0])
    out=[]
    for g in range(n+1):
        if g>0: out.append(mf[g-1])
        out+=gaps[g]
    return out
```

```python
import sys, math, struct
from asmlib import *
NAME="standalone__mha_softmax__near_ridge"
def f2u(x): return struct.unpack('<I',struct.pack('<f',x))[0]
DEF=dict(nfr=14, dma_e=3, dma_en=8, dma_s=2, pm1=1, pm2=3, pswitch=3, sidetail=6, cvspill=0, pkcv=0, presc=0, msum=0, ps0=12, nt_dma=1, stpair=0, npre=2, maxdma=4, stamps=0, PD=6, BOFF=4, early=5, prio=0, qn0=3, qn1=11, st0=18, st1=30, nt_st=0, nt_ld=1, share=1, slow=1, force_slow=0, pkadd=0, dmaspread=1.0, m16=1, verbose=0, nosm=0, nold=0)
def gen(**kw):
    o=dict(DEF); o.update(kw); M16=o['m16']; G=2 if M16 else 1
    O=0; QA=64; QB=96; S=[128,144]; P=[160,168]; FR=176; NFR=8
    NKA=4 if M16 else 8; KAD=208; VAD=KAD+NKA; DK=220; DV=221; QO=[222,223]; MC=[224,225]; L=[[226,228],[252,254]]; LA=[226,252]; RI=[230,232]; T=234; CI=[240,244]; ONE=248; sC2=35
    sQ=[8,12]; sK=16; sV=20; sO=[24,28]; sC=32; sW=33; sOFF=34; sFLAG=36
    pre=[]; a=pre.append
    def V(op,d,*src):
        regs=[x for x in src if isinstance(x,int)]
        return valu(f"{op} v{d}, "+", ".join(f"v{x}" if isinstance(x,int) else x for x in src),[d],regs)
    a(raw("s_cmp_ge_u32 s2, 256")); a(raw("s_cbranch_scc1 L_end"))
    a(raw("s_load_dwordx4 s[40:43], s[0:1], 0")); a(raw("s_load_dwordx4 s[44:47], s[0:1], 16")); a(raw("s_load_dwordx2 s[4:5], s[0:1], 40"))
    stl=[]
    def stamp():
        n=len(stl); stl.append(n); r=50+4*n; assert r+4<=102
        return [raw(f"s_memtime s[{r}:{r+1}]"),raw(f"s_memrealtime s[{r+2}:{r+3}]")]
    if o['stamps']: pre+=stamp()
    l=128; wv=129; h=130; l16=131; l32=132; t0=133; t1=134; q4=135; t2=136; g4=137; pg=138
    a(V("v_and_b32",l,"63",0)); a(V("v_lshrrev_b32",wv,"6",0)); a(raw("s_nop 0"))
    a(I(f"v_readfirstlane_b32 s{sW}, v{wv}",'rfl',[],[wv]))
    if o['share']:
        a(salu("s_and_b32 s3, s2, 7")); a(salu("s_lshr_b32 s6, s2, 4")); a(salu("s_lshl_b32 s3, s3, 4")); a(salu("s_add_u32 s3, s3, s6"))
        a(salu("s_lshr_b32 s7, s2, 3")); a(salu("s_and_b32 s7, s7, 1"))
    else:
        a(salu("s_lshr_b32 s3, s2, 1")); a(salu("s_and_b32 s7, s2, 1"))
    a(V("v_lshrrev_b32",h,"5",l)); a(V("v_and_b32",l16,"15",l)); a(V("v_and_b32",l32,"31",l)); a(V("v_lshrrev_b32",g4,"4",l))
    a(V("v_lshrrev_b32",t0,"4",0)); a(V("v_and_b32",t1,"15",t0)); a(V("v_xor_b32",t1,t1,l16)); a(V("v_lshlrev_b32",t1,"4",t1)); a(V("v_lshl_add_u32",DK,t0,"8",t1))
    if M16: a(V("v_and_b32",t1,"7",t0)); a(V("v_lshlrev_b32",t1,"1",t1))
    else: a(V("v_and_b32",t1,"3",t0)); a(V("v_lshlrev_b32",t1,"2",t1))
    a(V("v_xor_b32",t1,t1,l16)); a(V("v_lshlrev_b32",t1,"4",t1)); a(V("v_lshl_add_u32",DV,t0,"8",t1))
    if M16:
        a(V("v_and_b32",pg,"1",g4)); a(V("v_lshl_add_u32",pg,pg,"1",h))
        a(V("v_lshlrev_b32",t0,"4",wv)); a(V("v_add_u32",t0,t0,l16)); a(V("v_lshlrev_b32",t0,"9",t0)); a(V("v_lshl_add_u32",t0,pg,"4",t0))
    else:
        a(V("v_lshlrev_b32",t0,"5",wv)); a(V("v_add_u32",t0,t0,l32)); a(V("v_lshlrev_b32",t0,"8",t0)); a(V("v_lshl_add_u32",t0,h,"4",t0))
    a(salu("s_lshl_b32 s6, s7, 16")); a(V("v_add_u32",QO[0],"s6",t0)); a(salu("s_xor_b32 s6, s6, 0x10000")); a(V("v_add_u32",QO[1],"s6",t0))
    a(raw("s_waitcnt lgkmcnt(0)"))
    if o['stamps']==2: pre+=stamp()
    a(salu("s_mul_i32 s6, s3, 0x40000"))
    for sr,p in ((sK,42),(sV,44)):
        a(salu(f"s_add_u32 s{sr}, s{p}, s6")); a(salu(f"s_addc_u32 s{sr+1}, s{p+1}, 0")); a(salu(f"s_mov_b32 s{sr+2}, 0x40000")); a(salu(f"s_mov_b32 s{sr+3}, 0x20000"))
    a(salu(f"s_lshl_b32 s{sW}, s{sW}, 10"))
    nt = " nt" if o['nt_ld'] else ""
    def dma(kind,U):
        base=(0 if kind=='K' else 65536)+(U%8)*8192; sr=sK if kind=='K' else sV
        return [salu(f"s_add_u32 m0, s{sW}, {base}"), salu(f"s_mov_b32 s{sOFF}, {U*8192}"),
                I(f"buffer_load_dwordx4 v{DK if kind=='K' else DV}, s[{sr}:{sr+3}], s{sOFF} offen{' nt' if o['nt_dma'] else ''} lds",'dma',[],[DK,DV],tag=(kind,U))]
    pre+=dma('K',0)+dma('K',1)
    if o['stamps']==2: pre+=stamp()
    a(salu("s_mul_i32 s6, s3, 253952"))
    for srs,p in ((sQ,40),(sO,46)):
        a(salu(f"s_add_u32 s{srs[0]}, s{p}, s6")); a(salu(f"s_addc_u32 s{srs[0]+1}, s{p+1}, 0")); a(salu(f"s_mov_b32 s{srs[0]+2}, 126976")); a(salu(f"s_mov_b32 s{srs[0]+3}, 0x20000"))
        a(salu(f"s_add_u32 s{srs[1]}, s{srs[0]}, 126976")); a(salu(f"s_addc_u32 s{srs[1]+1}, s{srs[0]+1}, 0")); a(salu(f"s_mov_b32 s{srs[1]+2}, 126976")); a(salu(f"s_mov_b32 s{srs[1]+3}, 0x20000"))
    def qload(p,s):
        d=(QA,QB)[p]+4*s; off=(s%2)*256+(s//2)*64 if M16 else s*32
        return I(f"buffer_load_dwordx4 {vr(d,4)}, v{QO[p]}, s[{sQ[p]}:{sQ[p]+3}], 0 offen offset:{off}{nt}",'vld',R(d,4),[QO[p]])
    for s in range(8): a(qload(0,s))
    if o['stamps']==2: pre+=stamp()
    issued={('K',0),('K',1)}
    order=[(kd,u) for U in range(2,9) for kd,u in (('V',U-2),('K',U)) if u<8]
    for kd,u in order[:o['npre']]: pre+=dma(kd,u); issued.add((kd,u))
    if o['stamps']==2:
        pre+=stamp(); a(I("s_nop 0",'other',wait={('K',0)})); pre+=stamp(); a(I("s_nop 0",'other',u=[QA])); pre+=stamp(); a(I("s_nop 0",'other',u=[QA+28])); pre+=stamp()
    a(V("v_lshrrev_b32",q4,"2",l16))
    if M16:
        for s in range(4):
            a(V("v_add_u32",t0,str(4*s),pg)); a(V("v_xor_b32",t0,t0,l16)); a(V("v_lshlrev_b32",t0,"4",t0)); a(V("v_lshl_add_u32",KAD+s,l16,"8",t0))
        a(V("v_lshrrev_b32",t1,"2",l))
        a(V("v_lshlrev_b32",t0,"8",t1)); a(V("v_and_b32",t2,"3",l)); a(V("v_lshl_add_u32",t0,t2,"3",t0)); a(V("v_add_u32",t0,"0x10000",t0))
        a(V("v_and_b32",t1,"7",t1))
        for d in range(8): a(V("v_xor_b32",t2,str(d),t1)); a(V("v_lshl_add_u32",VAD+d,t2,"5",t0))
    else:
        for s in range(8):
            a(V("v_add_u32",t0,str(2*s),h)); a(V("v_xor_b32",t0,t0,l16)); a(V("v_lshlrev_b32",t0,"4",t0)); a(V("v_lshl_add_u32",KAD+s,l32,"8",t0))
        a(V("v_lshl_add_u32",t0,h,"2",q4)); a(V("v_lshlrev_b32",t0,"8",t0)); a(V("v_and_b32",t1,"16",l)); a(V("v_lshl_add_u32",t0,t1,"1",t0))
        a(V("v_and_b32",t1,"1",l)); a(V("v_lshl_add_u32",t0,t1,"4",t0)); a(V("v_and_b32",t1,"2",l)); a(V("v_lshl_add_u32",t0,t1,"2",t0))
        a(V("v_add_u32",t0,"0x10000",t0))
        for d in range(4): a(V("v_xor_b32",t2,str(d),q4)); a(V("v_lshl_add_u32",VAD+d,t2,"6",t0))
    c=(128**-0.5)*math.log2(math.e)
    a(salu(f"s_mov_b32 s{sC}, 0x{f2u(c):08x}"))
    chi=f2u(c)>>16; clo=f2u(c-struct.unpack('<f',struct.pack('<I',chi<<16))[0]); clo=(clo+0x8000)>>16
    a(salu(f"s_mov_b32 s{sC2}, 0x{(clo<<16)|chi:08x}"))
    def presc(p,s):
        r=[]
        for k in range(4):
            x=(QA,QB)[p]+4*s+k; t=T+2*(k%2)
            if o['presc']==1:
                r+=[I(f"v_dot2_f32_bf16 v{t}, v{x}, s{sC2}, 0 op_sel:[0,0,0] op_sel_hi:[0,1,0]",'dot',[t],[x]), I(f"v_dot2_f32_bf16 v{t+1}, v{x}, s{sC2}, 0 op_sel:[1,0,0] op_sel_hi:[1,1,0]",'dot',[t+1],[x])]
            else:
                r+=[V("v_lshlrev_b32",t,"16",x),V("v_and_b32",t+1,"0xffff0000",x),V("v_mul_f32",t,f"s{sC}",t),V("v_mul_f32",t+1,f"s{sC}",t+1)]
            if k>0: r.append(V("v_cvt_pk_bf16_f32",x-1,T+2*((k-1)%2),T+2*((k-1)%2)+1))
        r.append(V("v_cvt_pk_bf16_f32",(QA,QB)[p]+4*s+3,T+2,T+3))
        return r
    if o['msum']:
        for k in range(4): a(V("v_mov_b32",ONE+k,"0x3f803f80"))
    else:
        for p in range(2):
            for x in L[p]: a(V("v_mov_b32",x,"0")); a(V("v_mov_b32",x+1,"0"))
    if o['presc']:
        for s in range(8): pre+=presc(0,s)
    if o['prio']:
        a(salu(f"s_cmp_ge_u32 s{sW}, 4096")); a(raw("s_cbranch_scc0 L_prio")); a(raw("s_setprio 1")); a(I("L_prio:",'label'))
    NU=32; NFR=o['nfr']; FRB=[FR+4*k for k in range(8)]+[144,148,152,156,168,172]; S0=S[0]; P0=P[0]
    a(salu(f"s_cmp_ge_u32 s{sW}, 4096")); a(raw("s_cselect_b64 vcc, -1, 0"))
    def perm(n,x,y): return I(f"v_permlane{n}_swap_b32 v{x}, v{y}",'perm',[x,y],[x,y])
    def xred(op,regs,tmps):
        r=[]
        for n in (16,32): r+=[V("v_mov_b32",t,x) for x,t in zip(regs,tmps)]+[perm(n,x,t) for x,t in zip(regs,tmps)]+[V(op,x,x,t) for x,t in zip(regs,tmps)]
        return r
    def kread(U,s): ad=KAD+s%4; fb=FRB[s]; return I(f"ds_read_b128 {vr(fb,4)}, v{ad} offset:{(U%8)*8192+(s//4)*4096}",'ds',R(fb,4),[ad])
    def vfb(j): return FRB[(8+j)%NFR]
    def vread(U,j,u2): fb=vfb(j)+2*u2; return I(f"ds_read_b64_tr_b16 {vr(fb,2)}, v{VAD+j} offset:{(U%8)*8192+u2*4096}",'ds',R(fb,2),[VAD+j])
    bs=[U for U in range(-1,NU-1) if U<o['early'] or (U-o['early'])%2==1]
    def bwait(U):
        nx=[x for x in bs if x>U]; U2=nx[0] if nx else NU
        return {('K',x) for x in range(U+2 if U>=0 else 0,min(U2+2,NU))}|{('V',x) for x in range(max(U,0),min(U2,NU))}
    nlab=[0]
    def cbar(U,grp):
        if U not in bs: return []
        nlab[0]+=1; lb=f"L_b{nlab[0]}"
        return [raw(f"s_cbranch_vcc{'nz' if grp=='A' else 'z'} {lb}"), I("s_barrier",'cbar',wait=bwait(U)), I(lb+":",'label')]
    extra={U:[] for U in range(-1,NU+1)}
    vextra={U:[] for U in range(-1,NU+1)}
    for U in range(0,NU):
        b=max(x for x in bs if x<=U-1)
        todo=sorted([(X-1 if kd=='K' else X+0.5,kd,X) for X in range(NU) for kd in 'KV' if (kd,X) not in issued and X-8<=(b if kd=='K' else b-1)])
        for _,kd,X in todo[:(o['dma_e'] if U<o['dma_en'] else o['dma_s'])]: issued.add((kd,X)); extra[U].append(dma(kd,X))
    assert len(issued)==2*NU
    for s in range(8): extra[o['qn0']+(o['qn1']-o['qn0'])*s//8].append([qload(1,s)])
    if o['presc']:
        for s in range(8): vextra[o['ps0']+(16-o['ps0'])*s//8]+=presc(1,s)
    nts=" nt" if o['nt_st'] else ""
    def fin(p):
        l0,l1=LA if o['msum'] else L[p]
        thr=V("v_mov_b32",T+4,f"0x{f2u(2.0**(-1 if o['force_slow'] else 40)):08x}")
        r=[] if o['msum'] else xred("v_add_f32",[l0,l1],[T+2,T+3])
        return r+[trans(f"v_rcp_f32 v{RI[0]}, v{l0}",[RI[0]],[l0]),trans(f"v_rcp_f32 v{RI[1]}, v{l1}",[RI[1]],[l1]),thr,V("v_add_f32",T+5,l0,l1),
                  valu(f"v_cmp_nlt_f32 s[{sFLAG+2*p}:{sFLAG+2*p+1}], v{T+5}, v{T+4}",[],[T+5,T+4])]
    def conv(p,d,pk):
        X=(QA,QB)[p]; cv=[]; pend=None
        for k in range(8):
            r=O+16*d+2*k; qb=(k//2)%2; ri=RI[qb]; x=X+8*d+4*qb+2*(k//4)+k%2
            if pk: cv.append(valu(f"v_pk_mul_f32 {vr(r,2)}, {vr(r,2)}, {vr(ri,2)} op_sel_hi:[1,0]",[r,r+1],[r,r+1,ri]))
            else: cv+=[V("v_mul_f32",r,r,ri),V("v_mul_f32",r+1,r+1,ri)]
            if pend: cv.append(pend)
            pend=V("v_cvt_pk_bf16_f32",x,r,r+1)
        return cv+[pend]
    def store(p,d,g):
        x=(QA,QB)[p]+8*d+4*g
        return [perm(16,x,x+2),perm(16,x+1,x+3),I(f"buffer_store_dwordx4 {vr(x,4)}, v{QO[p]}, s[{sO[p]}:{sO[p]+3}], 0 offen offset:{d*64+256*g}{nts}",'vst',[],R(x,4)+[QO[p]],tag=('O',p))]
    for j in range(8): vextra[o['st0']+(o['st1']-o['st0'])*j//8]+=store(0,j//2,j%2)
    body=[I("s_barrier",'other',wait=bwait(-1))]+[kread(0,s) for s in range(8)]
    for U in range(NU+1):
        if o['stamps'] and U in ([0,1,5,9,13,17,21,25,29,32] if o['stamps']==1 else [0,1,5]): body+=stamp()
        body.append(raw(f"s_setprio {o['pm1']}"))
        ms=[]; rd=[vread(U-1,j,u2) for j in range(8) for u2 in range(2)] if U>=1 else []
        npre_v=0
        if U<NU:
            q=(QA,QB)[U//16]
            for s in range(8):
                kt,ds=s//4,s%4
                for qb in range(2): dd=S0+8*qb+4*kt; ms.append(mfma16(dd,FRB[s],q+4*(2*ds+qb),(CI[qb] if o['presc'] and U%16>=1 else None) if ds==0 else dd))
        else: rd=[]
        mx=[]
        if U==17 and o['cvspill']: mx=conv(0,3,0)
        for i,m in enumerate(ms):
            body.append(m)
            if i==o['pswitch']: body.append(raw(f"s_setprio {o['pm2']}"))
            if rd: body.append(rd[i])
            if mx: body+=mx[i*len(mx)//16:(i+1)*len(mx)//16]
        if U>=1:
            first=(U-1)%16==0
            if o['msum']: body+=[mfma16(LA[qb],ONE,P0+4*qb,None if first else LA[qb]) for qb in range(2)]
            for j in range(8):
                for qb in range(2): dd=O+8*j+4*qb; body.append(mfma16(dd,vfb(j),P0+4*qb,None if first else dd))
        body.append(raw("s_setprio 0"))
        body+=cbar(U,'B')
        if U==NU: break
        s=S0; p=U//16; lst=[]
        if U%16==0:
            for k in (0,3,5): lst+=[V("v_max3_f32",T+i,*( [s+8*i,s+8*i+1,s+8*i+2] if k==0 else [T+i,s+8*i+k,s+8*i+k+1])) for i in range(2)]
            lst+=[V("v_max_f32",T+i,T+i,s+8*i+7) for i in range(2)]+xred("v_max_f32",[T,T+1],[T+2,T+3])
            lst+=[V("v_sub_f32",CI[i]+k,"0",T+i) for k in range(4) for i in range(2)] if o['presc'] else [V("v_mul_f32",MC[i],f"s{sC}",T+i) for i in range(2)]
        def fm(k):
            if o['presc']: return [V("v_add_f32",r,r,CI[k//4]) for r in (s+2*k,s+2*k+1)] if U%16==0 else []
            return [valu(f"v_fma_f32 v{r}, v{r}, s{sC}, -v{MC[k//4]}",[r],[r,MC[k//4]]) for r in (s+2*k,s+2*k+1)]
        def ex(r): return [trans(f"v_exp_f32 v{r}, v{r}",[r],[r])]
        def ad(k): la=L[p][k//4]; return [] if o['msum'] else [V("v_add_f32",la,la,s+2*k),V("v_add_f32",la+1,la+1,s+2*k+1)]
        def cvt(k): return [V("v_cvt_pk_bf16_f32",P0+k,s+2*k,s+2*k+1)]
        units=[fm(0)]
        for k in range(8):
            units+=[ex(s+2*k), fm(k+1) if k<7 else [], ex(s+2*k+1)]
            if k>0: units.append(ad(k-1))
            if k%2==0 and k>0: units.append(cvt(k-2)+cvt(k-1))
        units+=[ad(7),cvt(6)+cvt(7)]
        units=[u for u in units if u]
        side=([[kread(U+1,k)] for k in range(8)] if U+1<NU else [[vread(U,j,u2)] for j in range(8) for u2 in range(2)])
        ex_=extra[U]; sidem=[]
        for k in range(max(len(side),len(ex_))):
            if k<len(ex_): sidem.append(ex_[k])
            if k<len(side): sidem.append(side[k])
        nu=len(units)-o['sidetail']
        for k,u in enumerate(units):
            lst+=u
            if k<nu:
                for z in sidem[k*len(sidem)//nu:(k+1)*len(sidem)//nu]: lst+=z
        if U%16==15 and not o['msum']: lst+=[V("v_add_f32",x,x,x+1) for x in L[p]]+fin(p)
        if U==16:
            pr=fin(0) if o['msum'] else []
            for d in range(3 if o['cvspill'] else 4): pr+=conv(0,d,o['pkcv'])
            lst=lst+pr
        body+=lst+vextra[U]
        body+=cbar(U,'A')
    if o['msum']: body+=fin(1)
    for d in range(4): body+=conv(1,d,1)+store(1,d,0)+store(1,d,1)
    post=[]
    if o['stamps']:
        post+=stamp(); post.append(I("s_nop 0",'other',wait={'VMALL'})); post+=stamp()
        post+= [raw("s_waitcnt lgkmcnt(0)"), salu("s_mov_b32 s8, s4"),salu("s_mov_b32 s9, s5"),salu("s_mov_b32 s10, 0x100000"),salu("s_mov_b32 s11, 0x20000"),
                salu("s_lshl_b32 s3, s2, 11"), salu(f"s_lshr_b32 s6, s{sW}, 2"), salu("s_add_u32 s3, s3, s6"), V("v_mov_b32",T,"s3"), raw("s_mov_b64 exec, 1")]
        for j in range(2*len(stl)):
            post+=[V("v_mov_b32",T+2,f"s{50+2*j}"),V("v_mov_b32",T+3,f"s{51+2*j}"), I(f"buffer_store_dwordx2 {vr(T+2,2)}, v{T}, s[8:11], 0 offen offset:{8*j}",'vst',[],[T,T+2,T+3])]
        post.append(raw("s_mov_b64 exec, -1"))
    slow=[]
    if o['slow'] and not o['stamps']:
        from slowpath import slowpath
        slow=slowpath(locals())
    ins=insert_waits(pre+body+post+slow)
    ins,nn=fix_hazards(ins,verbose=o['verbose'])
    txt=[x.t if x.k=='label' else "    "+x.t for x in ins if x.t]
    hdr=open('cdna_kernels/%s.s.ref'%NAME).read().split('; Override')[0]
    out=hdr+f"; @launch grid=(256,1,1) block=(512,1,1) lds=131072\n.amdgcn_target \"amdgcn-amd-amdhsa--gfx950\"\n.text\n.globl {NAME}_kernel\n.p2align 8\n.type {NAME}_kernel,@function\n{NAME}_kernel:\n"
    out+="\n".join(txt)+"\nL_end:\n    s_endpgm\n"
    out+=f""".section .rodata,"a"
.p2align 6
.amdhsa_kernel {NAME}_kernel
  .amdhsa_next_free_vgpr 256
  .amdhsa_next_free_sgpr 102
  .amdhsa_accum_offset 256
  .amdhsa_group_segment_fixed_size 0
  .amdhsa_kernarg_size 48
  .amdhsa_user_sgpr_count 2
  .amdhsa_user_sgpr_kernarg_segment_ptr 1
  .amdhsa_system_sgpr_workgroup_id_x 1
.end_amdhsa_kernel
"""
    return out,len(ins),nn
if __name__=="__main__":
    path=sys.argv[1]; kw={}
    for s in sys.argv[2:]:
        k,v=s.split('='); kw[k]=float(v) if '.' in v else int(v)
    out,n,nn=gen(**kw); open(path,'w').write(out); print(path,"insts",n,"nops",nn)
```

```python
import sys, math, struct
from asmlib import *
NAME="standalone__mha_softmax__near_ridge"
def f2u(x): return struct.unpack('<I',struct.pack('<f',x))[0]
DEF=dict(nfr=14, dma_e=3, dma_en=8, dma_s=2, pm1=1, pm2=3, pswitch=3, sidetail=6, cvspill=0, pkcv=0, presc=0, msum=0, ps0=12, nt_dma=1, stpair=0, npre=2, maxdma=4, stamps=0, PD=6, BOFF=4, early=5, prio=0, qn0=3, qn1=11, st0=18, st1=30, nt_st=0, nt_ld=1, share=1, slow=1, force_slow=0, pkadd=0, dmaspread=1.0, m16=1, verbose=0, nosm=0, nold=0)
def gen(**kw):
    o=dict(DEF); o.update(kw); M16=o['m16']; G=2 if M16 else 1
    O=0; QA=64; QB=96; S=[128,144]; P=[160,168]; FR=176; NFR=8
    NKA=4 if M16 else 8; KAD=208; VAD=KAD+NKA; DK=220; DV=221; QO=[222,223]; MC=[224,225]; L=[[226,228],[252,254]]; LA=[226,252]; RI=[230,232]; T=234; CI=[240,244]; ONE=248; sC2=35
    sQ=[8,12]; sK=16; sV=20; sO=[24,28]; sC=32; sW=33; sOFF=34; sFLAG=36
    pre=[]; a=pre.append
    def V(op,d,*src):
        regs=[x for x in src if isinstance(x,int)]
        return valu(f"{op} v{d}, "+", ".join(f"v{x}" if isinstance(x,int) else x for x in src),[d],regs)
    a(raw("s_cmp_ge_u32 s2, 256")); a(raw("s_cbranch_scc1 L_end"))
    a(raw("s_load_dwordx4 s[40:43], s[0:1], 0")); a(raw("s_load_dwordx4 s[44:47], s[0:1], 16")); a(raw(f"s_load_dwordx2 s[4:5], s[0:1], {32 if o['stamps']==3 else 40}"))
    stl=[]
    def stamp():
        n=len(stl); stl.append(n); r=50+4*n; assert r+4<=102
        return [raw(f"s_memtime s[{r}:{r+1}]"),raw(f"s_memrealtime s[{r+2}:{r+3}]")]
    if o['stamps']: pre+=stamp()
    l=128; wv=129; h=130; l16=131; l32=132; t0=133; t1=134; q4=135; t2=136; g4=137; pg=138
    a(V("v_and_b32",l,"63",0)); a(V("v_lshrrev_b32",wv,"6",0)); a(raw("s_nop 0"))
    a(I(f"v_readfirstlane_b32 s{sW}, v{wv}",'rfl',[],[wv]))
    if o['share']:
        a(salu("s_and_b32 s3, s2, 7")); a(salu("s_lshr_b32 s6, s2, 4")); a(salu("s_lshl_b32 s3, s3, 4")); a(salu("s_add_u32 s3, s3, s6"))
        a(salu("s_lshr_b32 s7, s2, 3")); a(salu("s_and_b32 s7, s7, 1"))
    else:
        a(salu("s_lshr_b32 s3, s2, 1")); a(salu("s_and_b32 s7, s2, 1"))
    a(V("v_lshrrev_b32",h,"5",l)); a(V("v_and_b32",l16,"15",l)); a(V("v_and_b32",l32,"31",l)); a(V("v_lshrrev_b32",g4,"4",l))
    a(V("v_lshrrev_b32",t0,"4",0)); a(V("v_and_b32",t1,"15",t0)); a(V("v_xor_b32",t1,t1,l16)); a(V("v_lshlrev_b32",t1,"4",t1)); a(V("v_lshl_add_u32",DK,t0,"8",t1))
    if M16: a(V("v_and_b32",t1,"7",t0)); a(V("v_lshlrev_b32",t1,"1",t1))
    else: a(V("v_and_b32",t1,"3",t0)); a(V("v_lshlrev_b32",t1,"2",t1))
    a(V("v_xor_b32",t1,t1,l16)); a(V("v_lshlrev_b32",t1,"4",t1)); a(V("v_lshl_add_u32",DV,t0,"8",t1))
    if M16:
        a(V("v_and_b32",pg,"1",g4)); a(V("v_lshl_add_u32",pg,pg,"1",h))
        a(V("v_lshlrev_b32",t0,"4",wv)); a(V("v_add_u32",t0,t0,l16)); a(V("v_lshlrev_b32",t0,"9",t0)); a(V("v_lshl_add_u32",t0,pg,"4",t0))
    else:
        a(V("v_lshlrev_b32",t0,"5",wv)); a(V("v_add_u32",t0,t0,l32)); a(V("v_lshlrev_b32",t0,"8",t0)); a(V("v_lshl_add_u32",t0,h,"4",t0))
    a(salu("s_lshl_b32 s6, s7, 16")); a(V("v_add_u32",QO[0],"s6",t0)); a(salu("s_xor_b32 s6, s6, 0x10000")); a(V("v_add_u32",QO[1],"s6",t0))
    a(raw("s_waitcnt lgkmcnt(0)"))
    if o['stamps']==2: pre+=stamp()
    a(salu("s_mul_i32 s6, s3, 0x40000"))
    for sr,p in ((sK,42),(sV,44)):
        a(salu(f"s_add_u32 s{sr}, s{p}, s6")); a(salu(f"s_addc_u32 s{sr+1}, s{p+1}, 0")); a(salu(f"s_mov_b32 s{sr+2}, 0x40000")); a(salu(f"s_mov_b32 s{sr+3}, 0x20000"))
    a(salu(f"s_lshl_b32 s{sW}, s{sW}, 10"))
    nt = " nt" if o['nt_ld'] else ""
    def dma(kind,U):
        base=(0 if kind=='K' else 65536)+(U%8)*8192; sr=sK if kind=='K' else sV
        return [salu(f"s_add_u32 m0, s{sW}, {base}"), salu(f"s_mov_b32 s{sOFF}, {U*8192}"),
                I(f"buffer_load_dwordx4 v{DK if kind=='K' else DV}, s[{sr}:{sr+3}], s{sOFF} offen{' nt' if o['nt_dma'] else ''} lds",'dma',[],[DK,DV],tag=(kind,U))]
    pre+=dma('K',0)+dma('K',1)
    if o['stamps']==2: pre+=stamp()
    a(salu("s_mul_i32 s6, s3, 253952"))
    for srs,p in ((sQ,40),(sO,46)):
        a(salu(f"s_add_u32 s{srs[0]}, s{p}, s6")); a(salu(f"s_addc_u32 s{srs[0]+1}, s{p+1}, 0")); a(salu(f"s_mov_b32 s{srs[0]+2}, 126976")); a(salu(f"s_mov_b32 s{srs[0]+3}, 0x20000"))
        a(salu(f"s_add_u32 s{srs[1]}, s{srs[0]}, 126976")); a(salu(f"s_addc_u32 s{srs[1]+1}, s{srs[0]+1}, 0")); a(salu(f"s_mov_b32 s{srs[1]+2}, 126976")); a(salu(f"s_mov_b32 s{srs[1]+3}, 0x20000"))
    def qload(p,s):
        d=(QA,QB)[p]+4*s; off=(s%2)*256+(s//2)*64 if M16 else s*32
        return I(f"buffer_load_dwordx4 {vr(d,4)}, v{QO[p]}, s[{sQ[p]}:{sQ[p]+3}], 0 offen offset:{off}{nt}",'vld',R(d,4),[QO[p]])
    for s in range(8): a(qload(0,s))
    if o['stamps']==2: pre+=stamp()
    issued={('K',0),('K',1)}
    order=[(kd,u) for U in range(2,9) for kd,u in (('V',U-2),('K',U)) if u<8]
    for kd,u in order[:o['npre']]: pre+=dma(kd,u); issued.add((kd,u))
    if o['stamps']==2:
        pre+=stamp(); a(I("s_nop 0",'other',wait={('K',0)})); pre+=stamp(); a(I("s_nop 0",'other',u=[QA])); pre+=stamp(); a(I("s_nop 0",'other',u=[QA+28])); pre+=stamp()
    a(V("v_lshrrev_b32",q4,"2",l16))
    if M16:
        for s in range(4):
            a(V("v_add_u32",t0,str(4*s),pg)); a(V("v_xor_b32",t0,t0,l16)); a(V("v_lshlrev_b32",t0,"4",t0)); a(V("v_lshl_add_u32",KAD+s,l16,"8",t0))
        a(V("v_lshrrev_b32",t1,"2",l))
        a(V("v_lshlrev_b32",t0,"8",t1)); a(V("v_and_b32",t2,"3",l)); a(V("v_lshl_add_u32",t0,t2,"3",t0)); a(V("v_add_u32",t0,"0x10000",t0))
        a(V("v_and_b32",t1,"7",t1))
        for d in range(8): a(V("v_xor_b32",t2,str(d),t1)); a(V("v_lshl_add_u32",VAD+d,t2,"5",t0))
    else:
        for s in range(8):
            a(V("v_add_u32",t0,str(2*s),h)); a(V("v_xor_b32",t0,t0,l16)); a(V("v_lshlrev_b32",t0,"4",t0)); a(V("v_lshl_add_u32",KAD+s,l32,"8",t0))
        a(V("v_lshl_add_u32",t0,h,"2",q4)); a(V("v_lshlrev_b32",t0,"8",t0)); a(V("v_and_b32",t1,"16",l)); a(V("v_lshl_add_u32",t0,t1,"1",t0))
        a(V("v_and_b32",t1,"1",l)); a(V("v_lshl_add_u32",t0,t1,"4",t0)); a(V("v_and_b32",t1,"2",l)); a(V("v_lshl_add_u32",t0,t1,"2",t0))
        a(V("v_add_u32",t0,"0x10000",t0))
        for d in range(4): a(V("v_xor_b32",t2,str(d),q4)); a(V("v_lshl_add_u32",VAD+d,t2,"6",t0))
    c=(128**-0.5)*math.log2(math.e)
    a(salu(f"s_mov_b32 s{sC}, 0x{f2u(c):08x}"))
    chi=f2u(c)>>16; clo=f2u(c-struct.unpack('<f',struct.pack('<I',chi<<16))[0]); clo=(clo+0x8000)>>16
    a(salu(f"s_mov_b32 s{sC2}, 0x{(clo<<16)|chi:08x}"))
    def presc(p,s):
        r=[]
        for k in range(4):
            x=(QA,QB)[p]+4*s+k; t=T+2*(k%2)
            if o['presc']==1:
                r+=[I(f"v_dot2_f32_bf16 v{t}, v{x}, s{sC2}, 0 op_sel:[0,0,0] op_sel_hi:[0,1,0]",'dot',[t],[x]), I(f"v_dot2_f32_bf16 v{t+1}, v{x}, s{sC2}, 0 op_sel:[1,0,0] op_sel_hi:[1,1,0]",'dot',[t+1],[x])]
            else:
                r+=[V("v_lshlrev_b32",t,"16",x),V("v_and_b32",t+1,"0xffff0000",x),V("v_mul_f32",t,f"s{sC}",t),V("v_mul_f32",t+1,f"s{sC}",t+1)]
            if k>0: r.append(V("v_cvt_pk_bf16_f32",x-1,T+2*((k-1)%2),T+2*((k-1)%2)+1))
        r.append(V("v_cvt_pk_bf16_f32",(QA,QB)[p]+4*s+3,T+2,T+3))
        return r
    if o['msum']:
        for k in range(4): a(V("v_mov_b32",ONE+k,"0x3f803f80"))
    else:
        for p in range(2):
            for x in L[p]: a(V("v_mov_b32",x,"0")); a(V("v_mov_b32",x+1,"0"))
    if o['presc']:
        for s in range(8): pre+=presc(0,s)
    if o['prio']:
        a(salu(f"s_cmp_ge_u32 s{sW}, 4096")); a(raw("s_cbranch_scc0 L_prio")); a(raw("s_setprio 1")); a(I("L_prio:",'label'))
    NU=32; NFR=o['nfr']; FRB=[FR+4*k for k in range(8)]+[144,148,152,156,168,172]; S0=S[0]; P0=P[0]
    a(salu(f"s_cmp_ge_u32 s{sW}, 4096")); a(raw("s_cselect_b64 vcc, -1, 0"))
    def perm(n,x,y): return I(f"v_permlane{n}_swap_b32 v{x}, v{y}",'perm',[x,y],[x,y])
    def xred(op,regs,tmps):
        r=[]
        for n in (16,32): r+=[V("v_mov_b32",t,x) for x,t in zip(regs,tmps)]+[perm(n,x,t) for x,t in zip(regs,tmps)]+[V(op,x,x,t) for x,t in zip(regs,tmps)]
        return r
    def kread(U,s): ad=KAD+s%4; fb=FRB[s]; return I(f"ds_read_b128 {vr(fb,4)}, v{ad} offset:{(U%8)*8192+(s//4)*4096}",'ds',R(fb,4),[ad])
    def vfb(j): return FRB[(8+j)%NFR]
    def vread(U,j,u2): fb=vfb(j)+2*u2; return I(f"ds_read_b64_tr_b16 {vr(fb,2)}, v{VAD+j} offset:{(U%8)*8192+u2*4096}",'ds',R(fb,2),[VAD+j])
    bs=[U for U in range(-1,NU-1) if U<o['early'] or (U-o['early'])%2==1]
    def bwait(U):
        nx=[x for x in bs if x>U]; U2=nx[0] if nx else NU
        return {('K',x) for x in range(U+2 if U>=0 else 0,min(U2+2,NU))}|{('V',x) for x in range(max(U,0),min(U2,NU))}
    nlab=[0]
    def cbar(U,grp):
        if U not in bs: return []
        nlab[0]+=1; lb=f"L_b{nlab[0]}"
        return [raw(f"s_cbranch_vcc{'nz' if grp=='A' else 'z'} {lb}"), I("s_barrier",'cbar',wait=bwait(U)), I(lb+":",'label')]
    extra={U:[] for U in range(-1,NU+1)}
    vextra={U:[] for U in range(-1,NU+1)}
    for U in range(0,NU):
        b=max(x for x in bs if x<=U-1)
        todo=sorted([(X-1 if kd=='K' else X+0.5,kd,X) for X in range(NU) for kd in 'KV' if (kd,X) not in issued and X-8<=(b if kd=='K' else b-1)])
        for _,kd,X in todo[:(o['dma_e'] if U<o['dma_en'] else o['dma_s'])]: issued.add((kd,X)); extra[U].append(dma(kd,X))
    assert len(issued)==2*NU
    for s in range(8): extra[o['qn0']+(o['qn1']-o['qn0'])*s//8].append([qload(1,s)])
    if o['presc']:
        for s in range(8): vextra[o['ps0']+(16-o['ps0'])*s//8]+=presc(1,s)
    nts=" nt" if o['nt_st'] else ""
    def fin(p):
        l0,l1=LA if o['msum'] else L[p]
        thr=V("v_mov_b32",T+4,f"0x{f2u(2.0**(-1 if o['force_slow'] else 40)):08x}")
        r=[] if o['msum'] else xred("v_add_f32",[l0,l1],[T+2,T+3])
        return r+[trans(f"v_rcp_f32 v{RI[0]}, v{l0}",[RI[0]],[l0]),trans(f"v_rcp_f32 v{RI[1]}, v{l1}",[RI[1]],[l1]),thr,V("v_add_f32",T+5,l0,l1),
                  valu(f"v_cmp_nlt_f32 s[{sFLAG+2*p}:{sFLAG+2*p+1}], v{T+5}, v{T+4}",[],[T+5,T+4])]
    def conv(p,d,pk):
        X=(QA,QB)[p]; cv=[]; pend=None
        for k in range(8):
            r=O+16*d+2*k; qb=(k//2)%2; ri=RI[qb]; x=X+8*d+4*qb+2*(k//4)+k%2
            if pk: cv.append(valu(f"v_pk_mul_f32 {vr(r,2)}, {vr(r,2)}, {vr(ri,2)} op_sel_hi:[1,0]",[r,r+1],[r,r+1,ri]))
            else: cv+=[V("v_mul_f32",r,r,ri),V("v_mul_f32",r+1,r+1,ri)]
            if pend: cv.append(pend)
            pend=V("v_cvt_pk_bf16_f32",x,r,r+1)
        return cv+[pend]
    def store(p,d,g):
        x=(QA,QB)[p]+8*d+4*g
        return [perm(16,x,x+2),perm(16,x+1,x+3),I(f"buffer_store_dwordx4 {vr(x,4)}, v{QO[p]}, s[{sO[p]}:{sO[p]+3}], 0 offen offset:{d*64+256*g}{nts}",'vst',[],R(x,4)+[QO[p]],tag=('O',p))]
    for j in range(8): vextra[o['st0']+(o['st1']-o['st0'])*j//8]+=store(0,j//2,j%2)
    body=[I("s_barrier",'other',wait=bwait(-1))]+[kread(0,s) for s in range(8)]
    for U in range(NU+1):
        if o['stamps'] and U in ([0,1,5,9,13,17,21,25,29,32] if o['stamps']==1 else [0,1,5] if o['stamps']==2 else [0,1,9,17,25,32]): body+=stamp()
        body.append(raw(f"s_setprio {o['pm1']}"))
        ms=[]; rd=[vread(U-1,j,u2) for j in range(8) for u2 in range(2)] if U>=1 else []
        npre_v=0
        if U<NU:
            q=(QA,QB)[U//16]
            for s in range(8):
                kt,ds=s//4,s%4
                for qb in range(2): dd=S0+8*qb+4*kt; ms.append(mfma16(dd,FRB[s],q+4*(2*ds+qb),(CI[qb] if o['presc'] and U%16>=1 else None) if ds==0 else dd))
        else: rd=[]
        mx=[]
        if U==17 and o['cvspill']: mx=conv(0,3,0)
        for i,m in enumerate(ms):
            body.append(m)
            if i==o['pswitch']: body.append(raw(f"s_setprio {o['pm2']}"))
            if rd: body.append(rd[i])
            if mx: body+=mx[i*len(mx)//16:(i+1)*len(mx)//16]
        if U>=1:
            first=(U-1)%16==0
            if o['msum']: body+=[mfma16(LA[qb],ONE,P0+4*qb,None if first else LA[qb]) for qb in range(2)]
            for j in range(8):
                for qb in range(2): dd=O+8*j+4*qb; body.append(mfma16(dd,vfb(j),P0+4*qb,None if first else dd))
        body.append(raw("s_setprio 0"))
        body+=cbar(U,'B')
        if U==NU: break
        s=S0; p=U//16; lst=[]
        if U%16==0:
            for k in (0,3,5): lst+=[V("v_max3_f32",T+i,*( [s+8*i,s+8*i+1,s+8*i+2] if k==0 else [T+i,s+8*i+k,s+8*i+k+1])) for i in range(2)]
            lst+=[V("v_max_f32",T+i,T+i,s+8*i+7) for i in range(2)]+xred("v_max_f32",[T,T+1],[T+2,T+3])
            lst+=[V("v_sub_f32",CI[i]+k,"0",T+i) for k in range(4) for i in range(2)] if o['presc'] else [V("v_mul_f32",MC[i],f"s{sC}",T+i) for i in range(2)]
        def fm(k):
            if o['presc']: return [V("v_add_f32",r,r,CI[k//4]) for r in (s+2*k,s+2*k+1)] if U%16==0 else []
            return [valu(f"v_fma_f32 v{r}, v{r}, s{sC}, -v{MC[k//4]}",[r],[r,MC[k//4]]) for r in (s+2*k,s+2*k+1)]
        def ex(r): return [trans(f"v_exp_f32 v{r}, v{r}",[r],[r])]
        def ad(k): la=L[p][k//4]; return [] if o['msum'] else [V("v_add_f32",la,la,s+2*k),V("v_add_f32",la+1,la+1,s+2*k+1)]
        def cvt(k): return [V("v_cvt_pk_bf16_f32",P0+k,s+2*k,s+2*k+1)]
        units=[fm(0)]
        for k in range(8):
            units+=[ex(s+2*k), fm(k+1) if k<7 else [], ex(s+2*k+1)]
            if k>0: units.append(ad(k-1))
            if k%2==0 and k>0: units.append(cvt(k-2)+cvt(k-1))
        units+=[ad(7),cvt(6)+cvt(7)]
        units=[u for u in units if u]
        side=([[kread(U+1,k)] for k in range(8)] if U+1<NU else [[vread(U,j,u2)] for j in range(8) for u2 in range(2)])
        ex_=extra[U]; sidem=[]
        for k in range(max(len(side),len(ex_))):
            if k<len(ex_): sidem.append(ex_[k])
            if k<len(side): sidem.append(side[k])
        nu=len(units)-o['sidetail']
        for k,u in enumerate(units):
            lst+=u
            if k<nu:
                for z in sidem[k*len(sidem)//nu:(k+1)*len(sidem)//nu]: lst+=z
        if U%16==15 and not o['msum']: lst+=[V("v_add_f32",x,x,x+1) for x in L[p]]+fin(p)
        if U==16:
            pr=fin(0) if o['msum'] else []
            for d in range(3 if o['cvspill'] else 4): pr+=conv(0,d,o['pkcv'])
            lst=lst+pr
        body+=lst+vextra[U]
        body+=cbar(U,'A')
    if o['msum']: body+=fin(1)
    for d in range(4): body+=conv(1,d,1)+store(1,d,0)+store(1,d,1)
    post=[]
    if o['stamps']==3:
        post+=stamp(); post.append(I("s_nop 0",'other',wait={'VMALL'})); post+=stamp()
        post+=[raw("s_waitcnt lgkmcnt(0)"), salu(f"s_add_u32 s3, s2, s{sW}"), salu("s_cmp_lg_u32 s3, 133"), raw("s_cbranch_scc1 L_end"),
               salu("s_mov_b32 s8, s4"),salu("s_mov_b32 s9, s5"),salu("s_mov_b32 s10, 256"),salu("s_mov_b32 s11, 0x20000"), V("v_mov_b32",T,"0"), raw("s_mov_b64 exec, 1")]
        for j in range(1,len(stl)):
            post+=[salu(f"s_sub_u32 s3, s{50+4*j}, s50"),salu(f"s_sub_u32 s6, s{52+4*j}, s52"),V("v_mov_b32",T+2,"s3"),V("v_mov_b32",T+3,"s6"),
                   I(f"buffer_store_dwordx2 {vr(T+2,2)}, v{T}, s[8:11], 0 offen offset:{8*(j-1)}",'vst',[],[T,T+2,T+3])]
    elif o['stamps']:
        post+=stamp(); post.append(I("s_nop 0",'other',wait={'VMALL'})); post+=stamp()
        post+= [raw("s_waitcnt lgkmcnt(0)"), salu("s_mov_b32 s8, s4"),salu("s_mov_b32 s9, s5"),salu("s_mov_b32 s10, 0x100000"),salu("s_mov_b32 s11, 0x20000"),
                salu("s_lshl_b32 s3, s2, 11"), salu(f"s_lshr_b32 s6, s{sW}, 2"), salu("s_add_u32 s3, s3, s6"), V("v_mov_b32",T,"s3"), raw("s_mov_b64 exec, 1")]
        for j in range(2*len(stl)):
            post+=[V("v_mov_b32",T+2,f"s{50+2*j}"),V("v_mov_b32",T+3,f"s{51+2*j}"), I(f"buffer_store_dwordx2 {vr(T+2,2)}, v{T}, s[8:11], 0 offen offset:{8*j}",'vst',[],[T,T+2,T+3])]
        post.append(raw("s_mov_b64 exec, -1"))
    slow=[]
    if o['slow'] and not o['stamps']:
        from slowpath import slowpath
        slow=slowpath(locals())
    ins=insert_waits(pre+body+post+slow)
    ins,nn=fix_hazards(ins,verbose=o['verbose'])
    txt=[x.t if x.k=='label' else "    "+x.t for x in ins if x.t]
    hdr=open('cdna_kernels/%s.s.ref'%NAME).read().split('; Override')[0]
    out=hdr+f"; @launch grid=(256,1,1) block=(512,1,1) lds=131072\n.amdgcn_target \"amdgcn-amd-amdhsa--gfx950\"\n.text\n.globl {NAME}_kernel\n.p2align 8\n.type {NAME}_kernel,@function\n{NAME}_kernel:\n"
    out+="\n".join(txt)+"\nL_end:\n    s_endpgm\n"
    out+=f""".section .rodata,"a"
.p2align 6
.amdhsa_kernel {NAME}_kernel
  .amdhsa_next_free_vgpr 256
  .amdhsa_next_free_sgpr 102
  .amdhsa_accum_offset 256
  .amdhsa_group_segment_fixed_size 0
  .amdhsa_kernarg_size 48
  .amdhsa_user_sgpr_count 2
  .amdhsa_user_sgpr_kernarg_segment_ptr 1
  .amdhsa_system_sgpr_workgroup_id_x 1
.end_amdhsa_kernel
"""
    return out,len(ins),nn
if __name__=="__main__":
    path=sys.argv[1]; kw={}
    for s in sys.argv[2:]:
        k,v=s.split('='); kw[k]=float(v) if '.' in v else int(v)
    out,n,nn=gen(**kw); open(path,'w').write(out); print(path,"insts",n,"nops",nn)
```

```python
import re
class I:
    __slots__=('t','k','d','u','tag','wait','c','srcc','g')
    def __init__(s,t,k,d=(),u=(),tag=None,wait=None,c=None,srcc=()):
        s.t=t; s.k=k; s.d=frozenset(d); s.u=frozenset(u); s.tag=tag; s.wait=wait; s.srcc=frozenset(srcc); s.g=None
        s.c = c if c is not None else {'mfma':8,'trans':8,'valu':4,'perm':4,'ds':4,'vld':8,'dma':8,'vst':8,'salu':2,'other':2}.get(k,4)
def R(a,n=1): return list(range(a,a+n))
def vr(a,n=1): return f"v{a}" if n==1 else f"v[{a}:{a+n-1}]"
def mfma(D,A,B,C=None):
    c = '0' if C is None else vr(C,16)
    cu = [] if C is None else R(C,16)
    return I(f"v_mfma_f32_32x32x16_bf16 {vr(D,16)}, {vr(A,4)}, {vr(B,4)}, {c}",'mfma',R(D,16),R(A,4)+R(B,4)+cu,srcc=cu)
def mfma16(D,A,B,C=None):
    c = '0' if C is None else vr(C,4)
    cu = [] if C is None else R(C,4)
    return I(f"v_mfma_f32_16x16x32_bf16 {vr(D,4)}, {vr(A,4)}, {vr(B,4)}, {c}",'mfma',R(D,4),R(A,4)+R(B,4)+cu,srcc=cu)
def valu(t,d,u): return I(t,'valu',d,u)
def trans(t,d,u): return I(t,'trans',d,u)
def salu(t): return I(t,'salu')
def raw(t): return I(t,'other')

def insert_waits(ins):
    out=[]; lg=[]; vm={'A':[],'B':[]}; seen={'A':set(),'B':set()}; alltags={'A':set(),'B':set()}
    for x in ins:
        if x.k=='dma':
            for g in ('AB' if x.g is None else x.g): alltags[g].add(x.tag)
    for x in ins:
        gs='AB' if x.g is None else x.g
        if x.k=='reset':
            lg=[]; vm={'A':[],'B':[]}; out.append(x); continue
        if x.wait:
            for t in x.wait:
                if not isinstance(t,str):
                    assert t in alltags['A']|alltags['B'], t
                    for g in gs: assert t in seen[g] or t not in alltags[g], ('barrier waits on unissued dma',t,g)
        need_lg=None; need_vm=None; touched=x.d|x.u
        for i,(regs,tag) in enumerate(lg):
            if regs & touched: need_lg=len(lg)-1-i
        for g in gs:
            q=vm[g]
            for i,(regs,tag) in enumerate(q):
                if regs & touched or (x.wait and tag in x.wait): n=len(q)-1-i; need_vm=n if need_vm is None else min(need_vm,n)
            if x.wait and 'VMALL' in x.wait and q: need_vm=0
        if x.wait and 'LGALL' in x.wait and lg: need_lg=0
        parts=[]
        if need_vm is not None:
            need_vm=min(need_vm,63); parts.append(f"vmcnt({need_vm})")
            for g in gs: vm[g]=vm[g][max(len(vm[g])-need_vm,0):] if need_vm else []
        if need_lg is not None:
            assert x.g is None
            need_lg=min(need_lg,15); parts.append(f"lgkmcnt({need_lg})"); lg=lg[len(lg)-need_lg:] if need_lg else []
        if parts: out.append(I("s_waitcnt "+" ".join(parts),'wait'))
        out.append(x)
        if x.k=='ds': assert x.g is None; lg.append((x.d,x.tag))
        elif x.k in('vld','dma','vst'):
            for g in gs:
                vm[g].append((x.d if x.k=='vld' else frozenset(),x.tag)); assert len(vm[g])<=63
                if x.k=='dma': seen[g].add(x.tag)
    return out

def states(x):
    if x.k in ('label','reset','comment'): return 0
    m=re.match(r's_nop (\d+)',x.t)
    return int(m.group(1))+1 if m else 1

def fix_hazards(ins, verbose=False):
    out=[]; nn=0
    VAL=('valu','trans','perm','dot')
    for x in ins:
        need=0; dist=0
        for p in reversed(out):
            if dist>=20: break
            req=0
            if p.k=='mfma':
                big=len(p.d)==16; r1=12 if big else 8
                if x.k=='mfma':
                    if (p.d & (x.u - x.srcc)): req=r1
                    elif (p.d & x.srcc) and p.d!=x.srcc: req=r1-2
                    elif (p.d & x.d) and not (p.d & x.srcc): req=r1
                elif (p.d & (x.u|x.d)): req=r1
                if x.k in VAL and (p.srcc & x.d): req=max(req,7 if big else 3)
            elif p.k in VAL:
                if x.k=='mfma' and (p.d & x.u): req=2
                if x.k=='perm' and (p.d & (x.u|x.d)): req=2
                if p.k=='trans' and x.k in ('valu','perm') and (p.d & x.u): req=max(req,1)
                if p.k=='dot' and (p.d & (x.u|x.d)): req=max(req,3)
                if x.k=='rfl' and (p.d & x.u): req=max(req,1)
            elif p.k=='vst':
                if (p.u & x.d): req=2
            elif p.k=='salu':
                if 'm0' in p.t.split(',')[0] and x.k=='dma': req=1
            need=max(need,req-dist)
            dist+=states(p)
        if need>0:
            nn+=1
            if verbose: print("nop",need,"before",x.t)
            out.append(I(f"s_nop {need-1}",'other'))
        out.append(x)
    return out,nn

def weave(mf, fill, lead=0):
    n=len(mf)
    gaps=[[] for _ in range(n+1)]
    total=sum(f[0].c for f in fill)
    per = total/ max(n,1)
    cum=0; g=0
    his=[f[2] for f in fill]
    for i in range(len(fill)-2,-1,-1): his[i]=min(his[i],his[i+1])
    for i,(x,lo,hi) in enumerate(fill):
        want = int((cum + x.c*0.5)/per)+1-lead if per>0 else 1
        want=max(want,lo,g); want=min(want,his[i],n)
        assert want>=lo and want>=g, (x.t,lo,hi,g,want)
        g=want; gaps[g].append(x); cum+=x.c
    out=[]
    for g in range(n+1):
        if g>0: out.append(mf[g-1])
        out+=gaps[g]
    return out

def merge(*streams):
    items=[]
    for si,(st,w0,w1) in enumerate(streams):
        tot=sum(f[0].c for f in st) or 1
        cum=0
        for j,f in enumerate(st):
            pos = w0+(w1-w0)*(cum+f[0].c*0.5)/tot
            pos=max(pos,f[1]); pos=min(pos,f[2]+0.99)
            items.append([pos,si,j,f]); cum+=f[0].c
        last=-1
        for it in items:
            if it[1]==si:
                it[0]=max(it[0],last); last=it[0]
    items.sort(key=lambda z:(z[0],z[1],z[2]))
    return items
def place(mf, streams):
    n=len(mf); gaps=[[] for _ in range(n+1)]
    for pos,si,j,f in merge(*streams):
        g=min(max(int(pos),0),n)
        assert f[1]<=g<=max(f[2],f[1]), (f[0].t,f[1],f[2],g)
        gaps[g].append(f[0])
    out=[]
    for g in range(n+1):
        if g>0: out.append(mf[g-1])
        out+=gaps[g]
    return out
```

```python
from asmlib import *
def slowpath(e):
    g=type('E',(),e); V=e['V']; o=e['o']
    O,QA,QB,S0,P0,FRB,KAD,VAD,T,LA,ONE,RI,MC,QO=[e[k] for k in "O QA QB S0 P0 FRB KAD VAD T LA ONE RI MC QO".split()]
    sQ,sO,sK,sV,sC,sW,sOFF,sFLAG=[e[k] for k in "sQ sO sK sV sC sW sOFF sFLAG".split()]
    full=lambda: [raw("s_waitcnt vmcnt(0) lgkmcnt(0)"),raw("s_nop 7"),raw("s_nop 7"),I("",'reset')]
    r=[raw("s_barrier"), salu(f"s_or_b64 s[48:49], s[{sFLAG}:{sFLAG+1}], s[{sFLAG+2}:{sFLAG+3}]"), raw("s_cbranch_scc0 L_end")]+full()
    VK=QB; VV=QB+8; MO=QB+16; AL=QB+18; l=QB+20; l16=QB+21; t0=QB+22; t1=QB+23
    r+=[salu(f"s_lshl_b32 s48, s{sW}, 3")]
    r+=[salu(f"s_sub_u32 s49, s48, {e['bias'](31)}")]
    for x in range(KAD,KAD+12): r.append(V("v_add_u32",x,"s49",x))
    r+=[V("v_mov_b32",ONE+k,"0x3f803f80") for k in range(4)]
    for p in range(2):
        r+=[salu(f"s_cmp_eq_u64 s[{sFLAG+2*p}:{sFLAG+2*p+1}], 0"), raw(f"s_cbranch_scc1 L_sk{p}")]
        r+=[valu(f"v_mbcnt_lo_u32_b32 v{l}, -1, 0",[l],[]), valu(f"v_mbcnt_hi_u32_b32 v{l}, -1, v{l}",[l],[l]), V("v_and_b32",l16,"15",l), V("v_lshrrev_b32",l,"4",l)]
        for j in range(8):
            r+=[V("v_add_u32",t0,str(4*j),l), V("v_and_b32",t1,"15",t0), V("v_xor_b32",t1,t1,l16), V("v_lshlrev_b32",t1,"4",t1), V("v_lshl_add_u32",VK+j,t0,"8",t1),
                V("v_and_b32",t1,"7",t0), V("v_lshlrev_b32",t1,"1",t1), V("v_xor_b32",t1,t1,l16), V("v_lshlrev_b32",t1,"4",t1), V("v_lshl_add_u32",VV+j,t0,"8",t1)]
        for s in range(8):
            d=QA+4*s; r.append(I(f"buffer_load_dwordx4 {vr(d,4)}, v{QO[p]}, s[{sQ[p]}:{sQ[p]+3}], 0 offen offset:{(s%2)*256+(s//2)*64}",'vld',R(d,4),[QO[p]]))
        for s in range(8): r+=e['qfix'](QA,s)
        for x in list(range(O,O+64))+R(LA[0],4)+R(LA[1],4): r.append(V("v_mov_b32",x,"0"))
        r+=[V("v_mov_b32",MO+i,"0xff800000") for i in range(2)]
        r+=[salu(f"s_mov_b32 s{sOFF}, {p*131072}")]+full()+[I(f"L_sl{p}:",'label')]
        for j in range(8):
            for base,vo,sr in ((0,VK,sK),(e['VB'],VV,sV)):
                r+=[salu(f"s_add_u32 m0, s48, {base+1024*j}"), I(f"buffer_load_dwordx4 v{vo+j}, s[{sr}:{sr+3}], s{sOFF} offen lds",'dma',[],[vo+j],tag=('S',p))]
        r+=full()
        r+=[e['kread'](0,s) for s in range(8)]
        for s in range(8):
            kt,ds=s//4,s%4
            for qb in range(2): dd=S0+8*qb+4*kt; r.append(mfma16(dd,FRB[s],QA+4*(2*ds+qb),None if ds==0 else dd))
        r+=[e['vread'](0,j,u2) for j in range(8) for u2 in range(2)]
        s=S0
        for k in (0,2,4,6): r+=[V("v_max3_f32",T+i,(MO+i if k==0 else T+i),s+8*i+k,s+8*i+k+1) for i in range(2)]
        r+=e['xred']("v_max_f32",[T,T+1],[T+2,T+3])
        for i in range(2):
            r+=[V("v_sub_f32",AL+i,MO+i,T+i), V("v_mul_f32",AL+i,f"s{sC}",AL+i), trans(f"v_exp_f32 v{AL+i}, v{AL+i}",[AL+i],[AL+i]), V("v_mov_b32",MO+i,T+i), V("v_mul_f32",MC[i],f"s{sC}",T+i)]
        for x in range(64): r.append(V("v_mul_f32",O+x,O+x,AL+(x//4)%2))
        for i in range(2): r+=[V("v_mul_f32",LA[i]+k,LA[i]+k,AL+i) for k in range(4)]
        for x in range(16): r+=[valu(f"v_fma_f32 v{s+x}, v{s+x}, s{sC}, -v{MC[x//8]}",[s+x],[s+x,MC[x//8]])]
        for x in range(16): r+=[trans(f"v_exp_f32 v{s+x}, v{s+x}",[s+x],[s+x])]
        for k in range(8): r+=[V("v_cvt_pk_bf16_f32",P0+k,s+2*k,s+2*k+1)]
        r+=[mfma16(LA[qb],ONE,P0+4*qb,LA[qb]) for qb in range(2)]
        for j in range(8):
            for qb in range(2): dd=O+8*j+4*qb; r.append(mfma16(dd,e['vfb'](j),P0+4*qb,dd))
        r+=full()+[salu(f"s_add_u32 s{sOFF}, s{sOFF}, 8192"), salu(f"s_cmp_lt_u32 s{sOFF}, {(p+1)*131072}"), raw(f"s_cbranch_scc1 L_sl{p}")]
        r+=[trans(f"v_rcp_f32 v{RI[i]}, v{LA[i]}",[RI[i]],[LA[i]]) for i in range(2)]
        for d in range(4):
            r+=e['conv'](0,d,0)
            for gq in range(2):
                x=QA+8*d+4*gq
                r+=[e['perm'](16,x,x+2),e['perm'](16,x+1,x+3)]+[e['bperm'](x+k,241) for k in range(4)]+[I(f"buffer_store_dwordx4 {vr(x,4)}, v{QO[p]}, s[{sO[p]}:{sO[p]+3}], 0 offen offset:{d*64+256*gq}",'vst',[],R(x,4)+[QO[p]])]
        r+=full()+[I(f"L_sk{p}:",'label')]
    return r
```

```python
import sys, math, struct
from asmlib import *
NAME="standalone__mha_softmax__near_ridge"
def f2u(x): return struct.unpack('<I',struct.pack('<f',x))[0]
DEF=dict(bq0=1, nb=0, bqfirst=1, bqpos=0, lag=2, bq=0, lg0=1, dmam=0, nodma=0, nfr=14, dma_e=3, dma_en=8, dma_s=2, pm1=1, pm2=3, pswitch=3, sidetail=6, cvspill=0, pkcv=0, presc=0, msum=1, ps0=12, nt_dma=1, stpair=0, npre=4, maxdma=4, stamps=0, PD=6, BOFF=4, early=6, prio=0, qn0=3, qn1=11, st0=18, st1=30, nt_st=1, nt_ld=1, share=1, slow=1, force_slow=0, pkadd=0, dmaspread=1.0, m16=1, verbose=0, nosm=0, nold=0)
def gen(**kw):
    o=dict(DEF); o.update(kw); M16=o['m16']; G=2 if M16 else 1
    O=0; QA=64; QB=96; S=[128,144]; P=[160,168]; FR=176; NFR=8
    NKA=4 if M16 else 8; KAD=208; VAD=KAD+NKA; DK=220; DV=221; QO=[222,223]; MC=[224,225]; L=[[226,228],[252,254]]; LA=[226,252]; RI=[230,232]; T=234; CI=[240,244]; ONE=248; sC2=35
    sQ=[8,12]; sK=16; sV=20; sO=[24,28]; sC=32; sW=33; sOFF=34; sFLAG=36
    pre=[]; a=pre.append
    def V(op,d,*src):
        regs=[x for x in src if isinstance(x,int)]
        return valu(f"{op} v{d}, "+", ".join(f"v{x}" if isinstance(x,int) else x for x in src),[d],regs)
    a(raw("s_cmp_ge_u32 s2, 256")); a(raw("s_cbranch_scc1 L_end"))
    a(raw("s_load_dwordx4 s[40:43], s[0:1], 0")); a(raw("s_load_dwordx4 s[44:47], s[0:1], 16")); a(raw(f"s_load_dwordx2 s[4:5], s[0:1], {32 if o['stamps']==3 else 40}"))
    stl=[]
    def stamp():
        n=len(stl); stl.append(n); r=50+4*n; assert r+4<=102
        return [raw(f"s_memtime s[{r}:{r+1}]"),raw(f"s_memrealtime s[{r+2}:{r+3}]")]
    if o['stamps']: pre+=stamp()
    l=128; wv=129; h=130; l16=131; l32=132; t0=133; t1=134; q4=135; t2=136; g4=137; pg=138
    a(V("v_and_b32",l,"63",0)); a(V("v_lshrrev_b32",wv,"6",0)); a(raw("s_nop 0"))
    a(I(f"v_readfirstlane_b32 s{sW}, v{wv}",'rfl',[],[wv]))
    if o['share']:
        a(salu("s_and_b32 s3, s2, 7")); a(salu("s_lshr_b32 s6, s2, 4")); a(salu("s_lshl_b32 s3, s3, 4")); a(salu("s_add_u32 s3, s3, s6"))
        a(salu("s_lshr_b32 s7, s2, 3")); a(salu("s_and_b32 s7, s7, 1"))
    else:
        a(salu("s_lshr_b32 s3, s2, 1")); a(salu("s_and_b32 s7, s2, 1"))
    a(V("v_lshrrev_b32",h,"5",l)); a(V("v_and_b32",l16,"15",l)); a(V("v_and_b32",l32,"31",l)); a(V("v_lshrrev_b32",g4,"4",l))
    a(V("v_lshrrev_b32",t0,"4",0)); a(V("v_and_b32",t1,"15",t0)); a(V("v_xor_b32",t1,t1,l16)); a(V("v_lshlrev_b32",t1,"4",t1)); a(V("v_lshl_add_u32",DK,t0,"8",t1))
    if M16: a(V("v_and_b32",t1,"7",t0)); a(V("v_lshlrev_b32",t1,"1",t1))
    else: a(V("v_and_b32",t1,"3",t0)); a(V("v_lshlrev_b32",t1,"2",t1))
    a(V("v_xor_b32",t1,t1,l16)); a(V("v_lshlrev_b32",t1,"4",t1)); a(V("v_lshl_add_u32",DV,t0,"8",t1))
    if M16:
        a(V("v_and_b32",pg,"1",g4)); a(V("v_lshl_add_u32",pg,pg,"1",h))
        a(V("v_lshlrev_b32",t0,"4",wv)); a(V("v_add_u32",t0,t0,l16)); a(V("v_lshlrev_b32",t0,"9",t0)); a(V("v_lshl_add_u32",t0,pg,"4",t0))
    else:
        a(V("v_lshlrev_b32",t0,"5",wv)); a(V("v_add_u32",t0,t0,l32)); a(V("v_lshlrev_b32",t0,"8",t0)); a(V("v_lshl_add_u32",t0,h,"4",t0))
    a(salu("s_lshl_b32 s6, s7, 16")); a(V("v_add_u32",QO[0],"s6",t0)); a(salu("s_xor_b32 s6, s6, 0x10000")); a(V("v_add_u32",QO[1],"s6",t0))
    a(raw("s_waitcnt lgkmcnt(0)"))
    if o['stamps']==2: pre+=stamp()
    a(salu("s_mul_i32 s6, s3, 0x40000"))
    for sr,p in ((sK,42),(sV,44)):
        a(salu(f"s_add_u32 s{sr}, s{p}, s6")); a(salu(f"s_addc_u32 s{sr+1}, s{p+1}, 0")); a(salu(f"s_mov_b32 s{sr+2}, 0x40000")); a(salu(f"s_mov_b32 s{sr+3}, 0x20000"))
    a(salu(f"s_lshl_b32 s{sW}, s{sW}, 10"))
    a(salu(f"s_cmp_ge_u32 s{sW}, 4096")); a(raw("s_cselect_b64 vcc, -1, 0"))
    nlab=[0]
    def only(grp,lst):
        if not lst: return []
        nlab[0]+=1; lb=f"L_g{nlab[0]}"
        for x in lst: x.g=grp
        return [raw(f"s_cbranch_vcc{'nz' if grp=='A' else 'z'} {lb}")]+lst+[I(lb+":",'label')]
    LAG=o['lag']
    nt = " nt" if o['nt_ld'] else ""
    def dma2(kind,U): return only('A',dma(kind,U)+dma(kind,U,4096)) if LAG else dma(kind,U)
    def dma(kind,U,ex=0):
        base=(0 if kind=='K' else 65536)+(U%8)*8192+ex; sr=sK if kind=='K' else sV
        return [salu(f"s_add_u32 m0, s{sW}, {base}"), salu(f"s_mov_b32 s{sOFF}, {U*8192+ex}"),
                I(f"buffer_load_dwordx4 v{DK if kind=='K' else DV}, s[{sr}:{sr+3}], s{sOFF} offen{' nt' if o['nt_dma'] else ''} lds",'dma',[],[DK,DV],tag=(kind,U))]
    pre+=dma('K',0)+dma('K',1)
    if o['stamps']==2: pre+=stamp()
    a(salu("s_mul_i32 s6, s3, 253952"))
    for srs,p in ((sQ,40),(sO,46)):
        a(salu(f"s_add_u32 s{srs[0]}, s{p}, s6")); a(salu(f"s_addc_u32 s{srs[0]+1}, s{p+1}, 0")); a(salu(f"s_mov_b32 s{srs[0]+2}, 126976")); a(salu(f"s_mov_b32 s{srs[0]+3}, 0x20000"))
        a(salu(f"s_add_u32 s{srs[1]}, s{srs[0]}, 126976")); a(salu(f"s_addc_u32 s{srs[1]+1}, s{srs[0]+1}, 0")); a(salu(f"s_mov_b32 s{srs[1]+2}, 126976")); a(salu(f"s_mov_b32 s{srs[1]+3}, 0x20000"))
    def qload(p,s):
        d=(QA,QB)[p]+4*s; off=(s%2)*256+(s//2)*64 if M16 else s*32
        return I(f"buffer_load_dwordx4 {vr(d,4)}, v{QO[p]}, s[{sQ[p]}:{sQ[p]+3}], 0 offen offset:{off}{nt}",'vld',R(d,4),[QO[p]])
    pre+=only('A',[qload(0,s) for s in range(8)]) if LAG and o['bq0']!=2 else [qload(0,s) for s in range(8)]
    if o['stamps']==2: pre+=stamp()
    issued={('K',0),('K',1)}
    order=[(kd,u) for U in range(2,9) for kd,u in (('V',U-2),('K',U)) if u<8]
    for kd,u in order[:o['npre']]: pre+=dma(kd,u); issued.add((kd,u))
    if LAG and o['bq0']==1: pre+=only('B',[qload(0,s) for s in range(8)])
    bl=[]
    for kd,u in order[o['npre']:o['npre']+o['nb']]: bl+=dma(kd,u)+dma(kd,u,-4096); issued.add((kd,u))
    if o['stamps']==2:
        pre+=stamp(); a(I("s_nop 0",'other',wait={('K',0)})); pre+=stamp(); a(I("s_nop 0",'other',u=[QA])); pre+=stamp(); a(I("s_nop 0",'other',u=[QA+28])); pre+=stamp()
    a(V("v_lshrrev_b32",q4,"2",l16))
    if M16:
        for s in range(4):
            a(V("v_add_u32",t0,str(4*s),pg)); a(V("v_xor_b32",t0,t0,l16)); a(V("v_lshlrev_b32",t0,"4",t0)); a(V("v_lshl_add_u32",KAD+s,l16,"8",t0))
        a(V("v_lshrrev_b32",t1,"2",l))
        a(V("v_lshlrev_b32",t0,"8",t1)); a(V("v_and_b32",t2,"3",l)); a(V("v_lshl_add_u32",t0,t2,"3",t0)); a(V("v_add_u32",t0,"0x10000",t0))
        a(V("v_and_b32",t1,"7",t1))
        for d in range(8): a(V("v_xor_b32",t2,str(d),t1)); a(V("v_lshl_add_u32",VAD+d,t2,"5",t0))
    else:
        for s in range(8):
            a(V("v_add_u32",t0,str(2*s),h)); a(V("v_xor_b32",t0,t0,l16)); a(V("v_lshlrev_b32",t0,"4",t0)); a(V("v_lshl_add_u32",KAD+s,l32,"8",t0))
        a(V("v_lshl_add_u32",t0,h,"2",q4)); a(V("v_lshlrev_b32",t0,"8",t0)); a(V("v_and_b32",t1,"16",l)); a(V("v_lshl_add_u32",t0,t1,"1",t0))
        a(V("v_and_b32",t1,"1",l)); a(V("v_lshl_add_u32",t0,t1,"4",t0)); a(V("v_and_b32",t1,"2",l)); a(V("v_lshl_add_u32",t0,t1,"2",t0))
        a(V("v_add_u32",t0,"0x10000",t0))
        for d in range(4): a(V("v_xor_b32",t2,str(d),q4)); a(V("v_lshl_add_u32",VAD+d,t2,"6",t0))
    c=(128**-0.5)*math.log2(math.e)
    a(salu(f"s_mov_b32 s{sC}, 0x{f2u(c):08x}"))
    chi=f2u(c)>>16; clo=f2u(c-struct.unpack('<f',struct.pack('<I',chi<<16))[0]); clo=(clo+0x8000)>>16
    a(salu(f"s_mov_b32 s{sC2}, 0x{(clo<<16)|chi:08x}"))
    def presc(p,s):
        r=[]
        for k in range(4):
            x=(QA,QB)[p]+4*s+k; t=T+2*(k%2)
            if o['presc']==1:
                r+=[I(f"v_dot2_f32_bf16 v{t}, v{x}, s{sC2}, 0 op_sel:[0,0,0] op_sel_hi:[0,1,0]",'dot',[t],[x]), I(f"v_dot2_f32_bf16 v{t+1}, v{x}, s{sC2}, 0 op_sel:[1,0,0] op_sel_hi:[1,1,0]",'dot',[t+1],[x])]
            else:
                r+=[V("v_lshlrev_b32",t,"16",x),V("v_and_b32",t+1,"0xffff0000",x),V("v_mul_f32",t,f"s{sC}",t),V("v_mul_f32",t+1,f"s{sC}",t+1)]
            if k>0: r.append(V("v_cvt_pk_bf16_f32",x-1,T+2*((k-1)%2),T+2*((k-1)%2)+1))
        r.append(V("v_cvt_pk_bf16_f32",(QA,QB)[p]+4*s+3,T+2,T+3))
        return r
    if o['msum']:
        for k in range(4): a(V("v_mov_b32",ONE+k,"0x3f803f80"))
    else:
        for p in range(2):
            for x in L[p]: a(V("v_mov_b32",x,"0")); a(V("v_mov_b32",x+1,"0"))

    if o['prio']:
        a(salu(f"s_cmp_ge_u32 s{sW}, 4096")); a(raw("s_cbranch_scc0 L_prio")); a(raw("s_setprio 1")); a(I("L_prio:",'label'))
    NU=32; NFR=o['nfr']; FRB=[FR+4*k for k in range(8)]+[144,148,152,156,168,172]; S0=S[0]; P0=P[0]
    def perm(n,x,y): return I(f"v_permlane{n}_swap_b32 v{x}, v{y}",'perm',[x,y],[x,y])
    def xred(op,regs,tmps):
        r=[]
        for n in (16,32): r+=[V("v_mov_b32",t,x) for x,t in zip(regs,tmps)]+[perm(n,x,t) for x,t in zip(regs,tmps)]+[V(op,x,x,t) for x,t in zip(regs,tmps)]
        return r
    def kread(U,s): ad=KAD+s%4; fb=FRB[s]; return I(f"ds_read_b128 {vr(fb,4)}, v{ad} offset:{(U%8)*8192+(s//4)*4096}",'ds',R(fb,4),[ad])
    def vfb(j): return FRB[(8+j)%NFR]
    def vread(U,j,u2): fb=vfb(j)+2*u2; return I(f"ds_read_b64_tr_b16 {vr(fb,2)}, v{VAD+j} offset:{(U%8)*8192+u2*4096}",'ds',R(fb,2),[VAD+j])
    bs=[U for U in range(-1,NU-1) if U<o['early'] or (U-o['early'])%2==1]
    def bwait(U):
        nx=[x for x in bs if x>U]; U2=nx[0] if nx else NU
        return {('K',x) for x in range(U+2 if U>=0 else 0,min(U2+2,NU))}|{('V',x) for x in range(max(U,0),min(U2,NU))}
    def cbar(U,grp):
        if grp=='B': U+=LAG
        return only(grp,[I("s_barrier",'other',wait=bwait(U))]) if U in bs else []
    extra={U:[] for U in range(-1,NU+1)}
    mextra={U:[] for U in range(-1,NU+2)}
    vextra={U:[] for U in range(-1,NU+1)}
    for U in range(0,NU):
        b=max(x for x in bs if x<=U-1)
        todo=sorted([(X-1 if kd=='K' else X+0.5,kd,X) for X in range(NU) for kd in 'KV' if (kd,X) not in issued and X-8<=max((b if kd=='K' else b-1)-LAG,-1)])
        for _,kd,X in todo[:(o['dma_e'] if U<o['dma_en'] else o['dma_s'])]: issued.add((kd,X)); (mextra if o['dmam'] else extra)[U+o['dmam']].append(dma2(kd,X) if not (o['nodma'] and X>=8) else [I("s_nop 0",'dma',tag=(kd,X))])
    assert len(issued)==2*NU
    for s in range(8): extra[o['qn0']+(o['qn1']-o['qn0'])*s//8].append([qload(1,s)])
    if o['presc']:
        for s in range(8): vextra[o['ps0']+(16-o['ps0'])*s//8]+=presc(1,s)
    nts=" nt" if o['nt_st'] else ""
    def fin(p):
        l0,l1=LA if o['msum'] else L[p]
        thr=V("v_mov_b32",T+4,f"0x{f2u(2.0**(-1 if o['force_slow'] else 30)):08x}")
        r=[] if o['msum'] else xred("v_add_f32",[l0,l1],[T+2,T+3])
        return r+[trans(f"v_rcp_f32 v{RI[0]}, v{l0}",[RI[0]],[l0]),trans(f"v_rcp_f32 v{RI[1]}, v{l1}",[RI[1]],[l1]),thr,V("v_add_f32",T+5,l0,l1),
                  valu(f"v_cmp_nlt_f32 s[{sFLAG+2*p}:{sFLAG+2*p+1}], v{T+5}, v{T+4}",[],[T+5,T+4])]
    def conv(p,d,pk):
        X=(QA,QB)[p]; cv=[]; pend=None
        for k in range(8):
            r=O+16*d+2*k; qb=(k//2)%2; ri=RI[qb]; x=X+8*d+4*qb+2*(k//4)+k%2
            if pk: cv.append(valu(f"v_pk_mul_f32 {vr(r,2)}, {vr(r,2)}, {vr(ri,2)} op_sel_hi:[1,0]",[r,r+1],[r,r+1,ri]))
            else: cv+=[V("v_mul_f32",r,r,ri),V("v_mul_f32",r+1,r+1,ri)]
            if pend: cv.append(pend)
            pend=V("v_cvt_pk_bf16_f32",x,r,r+1)
        return cv+[pend]
    def store(p,d,g):
        x=(QA,QB)[p]+8*d+4*g
        return [perm(16,x,x+2),perm(16,x+1,x+3),I(f"buffer_store_dwordx4 {vr(x,4)}, v{QO[p]}, s[{sO[p]}:{sO[p]+3}], 0 offen offset:{d*64+256*g}{nts}",'vst',[],R(x,4)+[QO[p]],tag=('O',p))]
    for j in range(8):
        if o['stpair']: vextra[o['st0']+(o['st1']-o['st0'])*(j//2)//4]+=store(0,(j//4)*2+j%2,(j//2)%2)
        else: vextra[o['st0']+(o['st1']-o['st0'])*j//8]+=store(0,j//2,j%2)
    body=[I("s_barrier",'other',wait=bwait(-1))]+[kread(0,s) for s in range(8)]
    if LAG:
        qb_=[] if o['bq0'] else [qload(0,s) for s in range(8)]
        for U in range(-LAG,0):
            if U+LAG==o['bqpos']: body+=only('B',qb_+bl if o['bqfirst'] else bl+qb_)
            body+=cbar(U,'B')
        if o['bq0']!=2 or bl: body+=only('A',[I("s_nop 0",'other',u=R(QA,32))])+only('B',[I("s_nop 0",'other',u=R(QA,32))])
    if o['presc']:
        for s in range(8): body+=presc(0,s)
    for U in range(NU+1):
        if o['stamps']==4:
            if U in (22,23,24): body+=stamp()
        elif o['stamps'] and U in ([0,1,5,9,13,17,21,25,29,32] if o['stamps']==1 else [0,1,5] if o['stamps']==2 else [0,1,9,17,25,32]): body+=stamp()
        body.append(I(f"s_setprio {o['pm1']}",'other',wait={'LGALL'} if o['lg0'] else None))
        ms=[]; rd=[vread(U-1,j,u2) for j in range(8) for u2 in range(2)] if U>=1 else []
        npre_v=0
        if U<NU:
            q=(QA,QB)[U//16]
            for s in range(8):
                kt,ds=s//4,s%4
                for qb in range(2): dd=S0+8*qb+4*kt; ms.append(mfma16(dd,FRB[s],q+4*(2*ds+qb),(CI[qb] if o['presc'] and U%16>=1 else None) if ds==0 else dd))
        else: rd=[]
        mx=[]
        if U==17 and o['cvspill']: mx=conv(0,3,0)
        for i,m in enumerate(ms):
            body.append(m)
            if i==o['pswitch']: body.append(raw(f"s_setprio {o['pm2']}"))
            if rd: body.append(rd[i])
            if mx: body+=mx[i*len(mx)//16:(i+1)*len(mx)//16]
        if U>=1:
            first=(U-1)%16==0
            if o['msum']: body+=[mfma16(LA[qb],ONE,P0+4*qb,None if first else LA[qb]) for qb in range(2)]
            for j in range(8):
                for qb in range(2): dd=O+8*j+4*qb; body.append(mfma16(dd,vfb(j),P0+4*qb,None if first else dd))
                if j%2==1 and j//2<len(mextra[U]): body+=mextra[U][j//2]
        body.append(raw("s_setprio 0"))
        if o['stamps']==4 and U in (22,23): body+=stamp()
        body+=cbar(U,'B')
        if o['stamps']==4 and U in (22,23): body+=stamp()
        if U==NU: break
        s=S0; p=U//16; lst=[]
        if U%16==0:
            for k in (0,3,5): lst+=[V("v_max3_f32",T+i,*( [s+8*i,s+8*i+1,s+8*i+2] if k==0 else [T+i,s+8*i+k,s+8*i+k+1])) for i in range(2)]
            lst+=[V("v_max_f32",T+i,T+i,s+8*i+7) for i in range(2)]+xred("v_max_f32",[T,T+1],[T+2,T+3])
            lst+=[V("v_sub_f32",CI[i]+k,"0",T+i) for k in range(4) for i in range(2)] if o['presc'] else [V("v_mul_f32",MC[i],f"s{sC}",T+i) for i in range(2)]
        def fm(k):
            if o['presc']: return [V("v_add_f32",r,r,CI[k//4]) for r in (s+2*k,s+2*k+1)] if U%16==0 else []
            return [valu(f"v_fma_f32 v{r}, v{r}, s{sC}, -v{MC[k//4]}",[r],[r,MC[k//4]]) for r in (s+2*k,s+2*k+1)]
        def ex(r): return [trans(f"v_exp_f32 v{r}, v{r}",[r],[r])]
        def ad(k): la=L[p][k//4]; return [] if o['msum'] else [V("v_add_f32",la,la,s+2*k),V("v_add_f32",la+1,la+1,s+2*k+1)]
        def cvt(k): return [V("v_cvt_pk_bf16_f32",P0+k,s+2*k,s+2*k+1)]
        units=[fm(0)]
        for k in range(8):
            units+=[ex(s+2*k), fm(k+1) if k<7 else [], ex(s+2*k+1)]
            if k>0: units.append(ad(k-1))
            if k%2==0 and k>0: units.append(cvt(k-2)+cvt(k-1))
        units+=[ad(7),cvt(6)+cvt(7)]
        units=[u for u in units if u]
        side=([[kread(U+1,k)] for k in range(8)] if U+1<NU else [[vread(U,j,u2)] for j in range(8) for u2 in range(2)])
        ex_=extra[U]; sidem=[]
        for k in range(max(len(side),len(ex_))):
            if k<len(ex_): sidem.append(ex_[k])
            if k<len(side): sidem.append(side[k])
        nu=len(units)-o['sidetail']
        for k,u in enumerate(units):
            lst+=u
            if k<nu:
                for z in sidem[k*len(sidem)//nu:(k+1)*len(sidem)//nu]: lst+=z
        if U%16==15 and not o['msum']: lst+=[V("v_add_f32",x,x,x+1) for x in L[p]]+fin(p)
        if U==16:
            pr=fin(0) if o['msum'] else []
            for d in range(3 if o['cvspill'] else 4): pr+=conv(0,d,o['pkcv'])
            lst=lst+pr
        body+=lst+vextra[U]
        if o['stamps']==4 and U in (22,23): body+=stamp()
        body+=cbar(U,'A')
    if o['msum']: body+=fin(1)
    if o['stpair']:
        for d in (0,2): body+=conv(1,d,1)+conv(1,d+1,1)+store(1,d,0)+store(1,d+1,0)+store(1,d,1)+store(1,d+1,1)
    else:
        for d in range(4): body+=conv(1,d,1)+store(1,d,0)+store(1,d,1)
    post=[]
    if o['stamps']==3:
        post+=stamp(); post.append(I("s_nop 0",'other',wait={'VMALL'})); post+=stamp()
        post+=[raw("s_waitcnt lgkmcnt(0)"), salu(f"s_add_u32 s3, s2, s{sW}"), salu("s_cmp_lg_u32 s3, 133"), raw("s_cbranch_scc1 L_end"),
               salu("s_mov_b32 s8, s4"),salu("s_mov_b32 s9, s5"),salu("s_mov_b32 s10, 256"),salu("s_mov_b32 s11, 0x20000"), V("v_mov_b32",T,"0"), raw("s_mov_b64 exec, 1")]
        for j in range(1,len(stl)):
            post+=[salu(f"s_sub_u32 s3, s{50+4*j}, s50"),salu(f"s_sub_u32 s6, s{52+4*j}, s52"),V("v_mov_b32",T+2,"s3"),V("v_mov_b32",T+3,"s6"),
                   I(f"buffer_store_dwordx2 {vr(T+2,2)}, v{T}, s[8:11], 0 offen offset:{8*(j-1)}",'vst',[],[T,T+2,T+3])]
    elif o['stamps']:
        post+=stamp(); post.append(I("s_nop 0",'other',wait={'VMALL'})); post+=stamp()
        post+= [raw("s_waitcnt lgkmcnt(0)"), salu("s_mov_b32 s8, s4"),salu("s_mov_b32 s9, s5"),salu("s_mov_b32 s10, 0x100000"),salu("s_mov_b32 s11, 0x20000"),
                salu("s_lshl_b32 s3, s2, 11"), salu(f"s_lshr_b32 s6, s{sW}, 2"), salu("s_add_u32 s3, s3, s6"), V("v_mov_b32",T,"s3"), raw("s_mov_b64 exec, 1")]
        for j in range(2*len(stl)):
            post+=[V("v_mov_b32",T+2,f"s{50+2*j}"),V("v_mov_b32",T+3,f"s{51+2*j}"), I(f"buffer_store_dwordx2 {vr(T+2,2)}, v{T}, s[8:11], 0 offen offset:{8*j}",'vst',[],[T,T+2,T+3])]
        post.append(raw("s_mov_b64 exec, -1"))
    slow=[]
    if o['slow'] and not o['stamps']:
        from slowpath import slowpath
        slow=slowpath(locals())
    ins=insert_waits(pre+body+post+slow)
    ins,nn=fix_hazards(ins,verbose=o['verbose'])
    txt=[x.t if x.k=='label' else "    "+x.t for x in ins if x.t]
    hdr=open('cdna_kernels/%s.s.ref'%NAME).read().split('; Override')[0]
    out=hdr+f"; @launch grid=(256,1,1) block=(512,1,1) lds=131072\n.amdgcn_target \"amdgcn-amd-amdhsa--gfx950\"\n.text\n.globl {NAME}_kernel\n.p2align 8\n.type {NAME}_kernel,@function\n{NAME}_kernel:\n"
    out+="\n".join(txt)+"\nL_end:\n    s_endpgm\n"
    out+=f""".section .rodata,"a"
.p2align 6
.amdhsa_kernel {NAME}_kernel
  .amdhsa_next_free_vgpr 256
  .amdhsa_next_free_sgpr 102
  .amdhsa_accum_offset 256
  .amdhsa_group_segment_fixed_size 0
  .amdhsa_kernarg_size 48
  .amdhsa_user_sgpr_count 2
  .amdhsa_user_sgpr_kernarg_segment_ptr 1
  .amdhsa_system_sgpr_workgroup_id_x 1
.end_amdhsa_kernel
"""
    return out,len(ins),nn
if __name__=="__main__":
    path=sys.argv[1]; kw={}
    for s in sys.argv[2:]:
        k,v=s.split('='); kw[k]=float(v) if '.' in v else int(v)
    out,n,nn=gen(**kw); open(path,'w').write(out); print(path,"insts",n,"nops",nn)
```

```python
import sys, math, struct
from asmlib import *
NAME="standalone__mha_softmax__near_ridge"
def f2u(x): return struct.unpack('<I',struct.pack('<f',x))[0]
DEF=dict(bq0=1, nb=0, bqfirst=1, bqpos=0, lag=2, bq=0, lg0=1, dmam=0, nodma=0, nfr=14, dma_e=3, dma_en=8, dma_s=2, pm1=1, pm2=3, pswitch=3, sidetail=6, cvspill=0, pkcv=0, presc=0, msum=1, ps0=12, nt_dma=1, stpair=0, npre=4, maxdma=4, stamps=0, PD=6, BOFF=4, early=6, prio=0, qn0=3, qn1=11, st0=18, st1=30, nt_st=3, nt_ld=1, share=1, slow=1, force_slow=0, pkadd=0, dmaspread=1.0, m16=1, verbose=0, nosm=0, nold=0)
POL=['',' nt',' sc1',' sc0 sc1',' nt sc1',' sc0 nt sc1',' sc0 nt']
def gen(**kw):
    o=dict(DEF); o.update(kw); M16=o['m16']; G=2 if M16 else 1
    O=0; QA=64; QB=96; S=[128,144]; P=[160,168]; FR=176; NFR=8
    NKA=4 if M16 else 8; KAD=208; VAD=KAD+NKA; DK=220; DV=221; QO=[222,223]; MC=[224,225]; L=[[226,228],[252,254]]; LA=[226,252]; RI=[230,232]; T=234; CI=[240,244]; ONE=248; sC2=35
    sQ=[8,12]; sK=16; sV=20; sO=[24,28]; sC=32; sW=33; sOFF=34; sFLAG=36
    pre=[]; a=pre.append
    def V(op,d,*src):
        regs=[x for x in src if isinstance(x,int)]
        return valu(f"{op} v{d}, "+", ".join(f"v{x}" if isinstance(x,int) else x for x in src),[d],regs)
    a(raw("s_cmp_ge_u32 s2, 256")); a(raw("s_cbranch_scc1 L_end"))
    a(raw("s_load_dwordx4 s[40:43], s[0:1], 0")); a(raw("s_load_dwordx4 s[44:47], s[0:1], 16")); a(raw(f"s_load_dwordx2 s[4:5], s[0:1], {32 if o['stamps']==3 else 40}"))
    stl=[]
    def stamp():
        n=len(stl); stl.append(n); r=50+4*n; assert r+4<=102
        return [raw(f"s_memtime s[{r}:{r+1}]"),raw(f"s_memrealtime s[{r+2}:{r+3}]")]
    if o['stamps']: pre+=stamp()
    l=128; wv=129; h=130; l16=131; l32=132; t0=133; t1=134; q4=135; t2=136; g4=137; pg=138
    a(V("v_and_b32",l,"63",0)); a(V("v_lshrrev_b32",wv,"6",0)); a(raw("s_nop 0"))
    a(I(f"v_readfirstlane_b32 s{sW}, v{wv}",'rfl',[],[wv]))
    if o['share']:
        a(salu("s_and_b32 s3, s2, 7")); a(salu("s_lshr_b32 s6, s2, 4")); a(salu("s_lshl_b32 s3, s3, 4")); a(salu("s_add_u32 s3, s3, s6"))
        a(salu("s_lshr_b32 s7, s2, 3")); a(salu("s_and_b32 s7, s7, 1"))
    else:
        a(salu("s_lshr_b32 s3, s2, 1")); a(salu("s_and_b32 s7, s2, 1"))
    a(V("v_lshrrev_b32",h,"5",l)); a(V("v_and_b32",l16,"15",l)); a(V("v_and_b32",l32,"31",l)); a(V("v_lshrrev_b32",g4,"4",l))
    a(V("v_lshrrev_b32",t0,"4",0)); a(V("v_and_b32",t1,"15",t0)); a(V("v_xor_b32",t1,t1,l16)); a(V("v_lshlrev_b32",t1,"4",t1)); a(V("v_lshl_add_u32",DK,t0,"8",t1))
    if M16: a(V("v_and_b32",t1,"7",t0)); a(V("v_lshlrev_b32",t1,"1",t1))
    else: a(V("v_and_b32",t1,"3",t0)); a(V("v_lshlrev_b32",t1,"2",t1))
    a(V("v_xor_b32",t1,t1,l16)); a(V("v_lshlrev_b32",t1,"4",t1)); a(V("v_lshl_add_u32",DV,t0,"8",t1))
    if M16:
        a(V("v_and_b32",pg,"1",g4)); a(V("v_lshl_add_u32",pg,pg,"1",h))
        a(V("v_lshlrev_b32",t0,"4",wv)); a(V("v_add_u32",t0,t0,l16)); a(V("v_lshlrev_b32",t0,"9",t0)); a(V("v_lshl_add_u32",t0,pg,"4",t0))
    else:
        a(V("v_lshlrev_b32",t0,"5",wv)); a(V("v_add_u32",t0,t0,l32)); a(V("v_lshlrev_b32",t0,"8",t0)); a(V("v_lshl_add_u32",t0,h,"4",t0))
    a(salu("s_lshl_b32 s6, s7, 16")); a(V("v_add_u32",QO[0],"s6",t0)); a(salu("s_xor_b32 s6, s6, 0x10000")); a(V("v_add_u32",QO[1],"s6",t0))
    a(raw("s_waitcnt lgkmcnt(0)"))
    if o['stamps']==2: pre+=stamp()
    a(salu("s_mul_i32 s6, s3, 0x40000"))
    for sr,p in ((sK,42),(sV,44)):
        a(salu(f"s_add_u32 s{sr}, s{p}, s6")); a(salu(f"s_addc_u32 s{sr+1}, s{p+1}, 0")); a(salu(f"s_mov_b32 s{sr+2}, 0x40000")); a(salu(f"s_mov_b32 s{sr+3}, 0x20000"))
    a(salu(f"s_lshl_b32 s{sW}, s{sW}, 10"))
    a(salu(f"s_cmp_ge_u32 s{sW}, 4096")); a(raw("s_cselect_b64 vcc, -1, 0"))
    nlab=[0]
    def only(grp,lst):
        if not lst: return []
        nlab[0]+=1; lb=f"L_g{nlab[0]}"
        for x in lst: x.g=grp
        return [raw(f"s_cbranch_vcc{'nz' if grp=='A' else 'z'} {lb}")]+lst+[I(lb+":",'label')]
    LAG=o['lag']
    nt=POL[o['nt_ld']]
    def dma2(kind,U): return only('A',dma(kind,U)+dma(kind,U,4096)) if LAG else dma(kind,U)
    def dma(kind,U,ex=0):
        base=(0 if kind=='K' else 65536)+(U%8)*8192+ex; sr=sK if kind=='K' else sV
        return [salu(f"s_add_u32 m0, s{sW}, {base}"), salu(f"s_mov_b32 s{sOFF}, {U*8192+ex}"),
                I(f"buffer_load_dwordx4 v{DK if kind=='K' else DV}, s[{sr}:{sr+3}], s{sOFF} offen{POL[o['nt_dma']]} lds",'dma',[],[DK,DV],tag=(kind,U))]
    pre+=dma('K',0)+dma('K',1)
    if o['stamps']==2: pre+=stamp()
    a(salu("s_mul_i32 s6, s3, 253952"))
    for srs,p in ((sQ,40),(sO,46)):
        a(salu(f"s_add_u32 s{srs[0]}, s{p}, s6")); a(salu(f"s_addc_u32 s{srs[0]+1}, s{p+1}, 0")); a(salu(f"s_mov_b32 s{srs[0]+2}, 126976")); a(salu(f"s_mov_b32 s{srs[0]+3}, 0x20000"))
        a(salu(f"s_add_u32 s{srs[1]}, s{srs[0]}, 126976")); a(salu(f"s_addc_u32 s{srs[1]+1}, s{srs[0]+1}, 0")); a(salu(f"s_mov_b32 s{srs[1]+2}, 126976")); a(salu(f"s_mov_b32 s{srs[1]+3}, 0x20000"))
    def qload(p,s):
        d=(QA,QB)[p]+4*s; off=(s%2)*256+(s//2)*64 if M16 else s*32
        return I(f"buffer_load_dwordx4 {vr(d,4)}, v{QO[p]}, s[{sQ[p]}:{sQ[p]+3}], 0 offen offset:{off}{nt}",'vld',R(d,4),[QO[p]])
    pre+=only('A',[qload(0,s) for s in range(8)]) if LAG and o['bq0']!=2 else [qload(0,s) for s in range(8)]
    if o['stamps']==2: pre+=stamp()
    issued={('K',0),('K',1)}
    order=[(kd,u) for U in range(2,9) for kd,u in (('V',U-2),('K',U)) if u<8]
    for kd,u in order[:o['npre']]: pre+=dma(kd,u); issued.add((kd,u))
    if LAG and o['bq0']==1: pre+=only('B',[qload(0,s) for s in range(8)])
    bl=[]
    for kd,u in order[o['npre']:o['npre']+o['nb']]: bl+=dma(kd,u)+dma(kd,u,-4096); issued.add((kd,u))
    if o['stamps']==2:
        pre+=stamp(); a(I("s_nop 0",'other',wait={('K',0)})); pre+=stamp(); a(I("s_nop 0",'other',u=[QA])); pre+=stamp(); a(I("s_nop 0",'other',u=[QA+28])); pre+=stamp()
    a(V("v_lshrrev_b32",q4,"2",l16))
    if M16:
        for s in range(4):
            a(V("v_add_u32",t0,str(4*s),pg)); a(V("v_xor_b32",t0,t0,l16)); a(V("v_lshlrev_b32",t0,"4",t0)); a(V("v_lshl_add_u32",KAD+s,l16,"8",t0))
        a(V("v_lshrrev_b32",t1,"2",l))
        a(V("v_lshlrev_b32",t0,"8",t1)); a(V("v_and_b32",t2,"3",l)); a(V("v_lshl_add_u32",t0,t2,"3",t0)); a(V("v_add_u32",t0,"0x10000",t0))
        a(V("v_and_b32",t1,"7",t1))
        for d in range(8): a(V("v_xor_b32",t2,str(d),t1)); a(V("v_lshl_add_u32",VAD+d,t2,"5",t0))
    else:
        for s in range(8):
            a(V("v_add_u32",t0,str(2*s),h)); a(V("v_xor_b32",t0,t0,l16)); a(V("v_lshlrev_b32",t0,"4",t0)); a(V("v_lshl_add_u32",KAD+s,l32,"8",t0))
        a(V("v_lshl_add_u32",t0,h,"2",q4)); a(V("v_lshlrev_b32",t0,"8",t0)); a(V("v_and_b32",t1,"16",l)); a(V("v_lshl_add_u32",t0,t1,"1",t0))
        a(V("v_and_b32",t1,"1",l)); a(V("v_lshl_add_u32",t0,t1,"4",t0)); a(V("v_and_b32",t1,"2",l)); a(V("v_lshl_add_u32",t0,t1,"2",t0))
        a(V("v_add_u32",t0,"0x10000",t0))
        for d in range(4): a(V("v_xor_b32",t2,str(d),q4)); a(V("v_lshl_add_u32",VAD+d,t2,"6",t0))
    c=(128**-0.5)*math.log2(math.e)
    a(salu(f"s_mov_b32 s{sC}, 0x{f2u(c):08x}"))
    chi=f2u(c)>>16; clo=f2u(c-struct.unpack('<f',struct.pack('<I',chi<<16))[0]); clo=(clo+0x8000)>>16
    a(salu(f"s_mov_b32 s{sC2}, 0x{(clo<<16)|chi:08x}"))
    def presc(p,s):
        r=[]
        for k in range(4):
            x=(QA,QB)[p]+4*s+k; t=T+2*(k%2)
            if o['presc']==1:
                r+=[I(f"v_dot2_f32_bf16 v{t}, v{x}, s{sC2}, 0 op_sel:[0,0,0] op_sel_hi:[0,1,0]",'dot',[t],[x]), I(f"v_dot2_f32_bf16 v{t+1}, v{x}, s{sC2}, 0 op_sel:[1,0,0] op_sel_hi:[1,1,0]",'dot',[t+1],[x])]
            else:
                r+=[V("v_lshlrev_b32",t,"16",x),V("v_and_b32",t+1,"0xffff0000",x),V("v_mul_f32",t,f"s{sC}",t),V("v_mul_f32",t+1,f"s{sC}",t+1)]
            if k>0: r.append(V("v_cvt_pk_bf16_f32",x-1,T+2*((k-1)%2),T+2*((k-1)%2)+1))
        r.append(V("v_cvt_pk_bf16_f32",(QA,QB)[p]+4*s+3,T+2,T+3))
        return r
    if o['msum']:
        for k in range(4): a(V("v_mov_b32",ONE+k,"0x3f803f80"))
    else:
        for p in range(2):
            for x in L[p]: a(V("v_mov_b32",x,"0")); a(V("v_mov_b32",x+1,"0"))

    if o['prio']:
        a(salu(f"s_cmp_ge_u32 s{sW}, 4096")); a(raw("s_cbranch_scc0 L_prio")); a(raw("s_setprio 1")); a(I("L_prio:",'label'))
    NU=32; NFR=o['nfr']; FRB=[FR+4*k for k in range(8)]+[144,148,152,156,168,172]; S0=S[0]; P0=P[0]
    def perm(n,x,y): return I(f"v_permlane{n}_swap_b32 v{x}, v{y}",'perm',[x,y],[x,y])
    def xred(op,regs,tmps):
        r=[]
        for n in (16,32): r+=[V("v_mov_b32",t,x) for x,t in zip(regs,tmps)]+[perm(n,x,t) for x,t in zip(regs,tmps)]+[V(op,x,x,t) for x,t in zip(regs,tmps)]
        return r
    def kread(U,s): ad=KAD+s%4; fb=FRB[s]; return I(f"ds_read_b128 {vr(fb,4)}, v{ad} offset:{(U%8)*8192+(s//4)*4096}",'ds',R(fb,4),[ad])
    def vfb(j): return FRB[(8+j)%NFR]
    def vread(U,j,u2): fb=vfb(j)+2*u2; return I(f"ds_read_b64_tr_b16 {vr(fb,2)}, v{VAD+j} offset:{(U%8)*8192+u2*4096}",'ds',R(fb,2),[VAD+j])
    bs=[U for U in range(-1,NU-1) if U<o['early'] or (U-o['early'])%2==1]
    def bwait(U):
        nx=[x for x in bs if x>U]; U2=nx[0] if nx else NU
        return {('K',x) for x in range(U+2 if U>=0 else 0,min(U2+2,NU))}|{('V',x) for x in range(max(U,0),min(U2,NU))}
    def cbar(U,grp):
        if grp=='B': U+=LAG
        return only(grp,[I("s_barrier",'other',wait=bwait(U))]) if U in bs else []
    extra={U:[] for U in range(-1,NU+1)}
    mextra={U:[] for U in range(-1,NU+2)}
    vextra={U:[] for U in range(-1,NU+1)}
    for U in range(0,NU):
        b=max(x for x in bs if x<=U-1)
        todo=sorted([(X-1 if kd=='K' else X+0.5,kd,X) for X in range(NU) for kd in 'KV' if (kd,X) not in issued and X-8<=max((b if kd=='K' else b-1)-LAG,-1)])
        for _,kd,X in todo[:(o['dma_e'] if U<o['dma_en'] else o['dma_s'])]: issued.add((kd,X)); (mextra if o['dmam'] else extra)[U+o['dmam']].append(dma2(kd,X) if not (o['nodma'] and X>=8) else [I("s_nop 0",'dma',tag=(kd,X))])
    assert len(issued)==2*NU
    for s in range(8): extra[o['qn0']+(o['qn1']-o['qn0'])*s//8].append([qload(1,s)])
    if o['presc']:
        for s in range(8): vextra[o['ps0']+(16-o['ps0'])*s//8]+=presc(1,s)
    nts=POL[o['nt_st']]
    def fin(p):
        l0,l1=LA if o['msum'] else L[p]
        thr=V("v_mov_b32",T+4,f"0x{f2u(2.0**(-1 if o['force_slow'] else 30)):08x}")
        r=[] if o['msum'] else xred("v_add_f32",[l0,l1],[T+2,T+3])
        return r+[trans(f"v_rcp_f32 v{RI[0]}, v{l0}",[RI[0]],[l0]),trans(f"v_rcp_f32 v{RI[1]}, v{l1}",[RI[1]],[l1]),thr,V("v_add_f32",T+5,l0,l1),
                  valu(f"v_cmp_nlt_f32 s[{sFLAG+2*p}:{sFLAG+2*p+1}], v{T+5}, v{T+4}",[],[T+5,T+4])]
    def conv(p,d,pk):
        X=(QA,QB)[p]; cv=[]; pend=None
        for k in range(8):
            r=O+16*d+2*k; qb=(k//2)%2; ri=RI[qb]; x=X+8*d+4*qb+2*(k//4)+k%2
            if pk: cv.append(valu(f"v_pk_mul_f32 {vr(r,2)}, {vr(r,2)}, {vr(ri,2)} op_sel_hi:[1,0]",[r,r+1],[r,r+1,ri]))
            else: cv+=[V("v_mul_f32",r,r,ri),V("v_mul_f32",r+1,r+1,ri)]
            if pend: cv.append(pend)
            pend=V("v_cvt_pk_bf16_f32",x,r,r+1)
        return cv+[pend]
    def store(p,d,g):
        x=(QA,QB)[p]+8*d+4*g
        return [perm(16,x,x+2),perm(16,x+1,x+3),I(f"buffer_store_dwordx4 {vr(x,4)}, v{QO[p]}, s[{sO[p]}:{sO[p]+3}], 0 offen offset:{d*64+256*g}{nts}",'vst',[],R(x,4)+[QO[p]],tag=('O',p))]
    for j in range(8):
        if o['stpair']: vextra[o['st0']+(o['st1']-o['st0'])*(j//2)//4]+=store(0,(j//4)*2+j%2,(j//2)%2)
        else: vextra[o['st0']+(o['st1']-o['st0'])*j//8]+=store(0,j//2,j%2)
    body=[I("s_barrier",'other',wait=bwait(-1))]+[kread(0,s) for s in range(8)]
    if LAG:
        qb_=[] if o['bq0'] else [qload(0,s) for s in range(8)]
        for U in range(-LAG,0):
            if U+LAG==o['bqpos']: body+=only('B',qb_+bl if o['bqfirst'] else bl+qb_)
            body+=cbar(U,'B')
        if o['bq0']!=2 or bl: body+=only('A',[I("s_nop 0",'other',u=R(QA,32))])+only('B',[I("s_nop 0",'other',u=R(QA,32))])
    if o['presc']:
        for s in range(8): body+=presc(0,s)
    for U in range(NU+1):
        if o['stamps']==4:
            if U in (22,23,24): body+=stamp()
        elif o['stamps'] and U in ([0,1,5,9,13,17,21,25,29,32] if o['stamps']==1 else [0,1,5] if o['stamps']==2 else [0,1,9,17,25,32]): body+=stamp()
        body.append(I(f"s_setprio {o['pm1']}",'other',wait={'LGALL'} if o['lg0'] else None))
        ms=[]; rd=[vread(U-1,j,u2) for j in range(8) for u2 in range(2)] if U>=1 else []
        npre_v=0
        if U<NU:
            q=(QA,QB)[U//16]
            for s in range(8):
                kt,ds=s//4,s%4
                for qb in range(2): dd=S0+8*qb+4*kt; ms.append(mfma16(dd,FRB[s],q+4*(2*ds+qb),(CI[qb] if o['presc'] and U%16>=1 else None) if ds==0 else dd))
        else: rd=[]
        mx=[]
        if U==17 and o['cvspill']: mx=conv(0,3,0)
        for i,m in enumerate(ms):
            body.append(m)
            if i==o['pswitch']: body.append(raw(f"s_setprio {o['pm2']}"))
            if rd: body.append(rd[i])
            if mx: body+=mx[i*len(mx)//16:(i+1)*len(mx)//16]
        if U>=1:
            first=(U-1)%16==0
            if o['msum']: body+=[mfma16(LA[qb],ONE,P0+4*qb,None if first else LA[qb]) for qb in range(2)]
            for j in range(8):
                for qb in range(2): dd=O+8*j+4*qb; body.append(mfma16(dd,vfb(j),P0+4*qb,None if first else dd))
                if j%2==1 and j//2<len(mextra[U]): body+=mextra[U][j//2]
        body.append(raw("s_setprio 0"))
        if o['stamps']==4 and U in (22,23): body+=stamp()
        body+=cbar(U,'B')
        if o['stamps']==4 and U in (22,23): body+=stamp()
        if U==NU: break
        s=S0; p=U//16; lst=[]
        if U%16==0:
            for k in (0,3,5): lst+=[V("v_max3_f32",T+i,*( [s+8*i,s+8*i+1,s+8*i+2] if k==0 else [T+i,s+8*i+k,s+8*i+k+1])) for i in range(2)]
            lst+=[V("v_max_f32",T+i,T+i,s+8*i+7) for i in range(2)]+xred("v_max_f32",[T,T+1],[T+2,T+3])
            lst+=[V("v_sub_f32",CI[i]+k,"0",T+i) for k in range(4) for i in range(2)] if o['presc'] else [V("v_mul_f32",MC[i],f"s{sC}",T+i) for i in range(2)]
        def fm(k):
            if o['presc']: return [V("v_add_f32",r,r,CI[k//4]) for r in (s+2*k,s+2*k+1)] if U%16==0 else []
            return [valu(f"v_fma_f32 v{r}, v{r}, s{sC}, -v{MC[k//4]}",[r],[r,MC[k//4]]) for r in (s+2*k,s+2*k+1)]
        def ex(r): return [trans(f"v_exp_f32 v{r}, v{r}",[r],[r])]
        def ad(k): la=L[p][k//4]; return [] if o['msum'] else [V("v_add_f32",la,la,s+2*k),V("v_add_f32",la+1,la+1,s+2*k+1)]
        def cvt(k): return [V("v_cvt_pk_bf16_f32",P0+k,s+2*k,s+2*k+1)]
        units=[fm(0)]
        for k in range(8):
            units+=[ex(s+2*k), fm(k+1) if k<7 else [], ex(s+2*k+1)]
            if k>0: units.append(ad(k-1))
            if k%2==0 and k>0: units.append(cvt(k-2)+cvt(k-1))
        units+=[ad(7),cvt(6)+cvt(7)]
        units=[u for u in units if u]
        side=([[kread(U+1,k)] for k in range(8)] if U+1<NU else [[vread(U,j,u2)] for j in range(8) for u2 in range(2)])
        ex_=extra[U]; sidem=[]
        for k in range(max(len(side),len(ex_))):
            if k<len(ex_): sidem.append(ex_[k])
            if k<len(side): sidem.append(side[k])
        nu=len(units)-o['sidetail']
        for k,u in enumerate(units):
            lst+=u
            if k<nu:
                for z in sidem[k*len(sidem)//nu:(k+1)*len(sidem)//nu]: lst+=z
        if U%16==15 and not o['msum']: lst+=[V("v_add_f32",x,x,x+1) for x in L[p]]+fin(p)
        if U==16:
            pr=fin(0) if o['msum'] else []
            for d in range(3 if o['cvspill'] else 4): pr+=conv(0,d,o['pkcv'])
            lst=lst+pr
        body+=lst+vextra[U]
        if o['stamps']==4 and U in (22,23): body+=stamp()
        body+=cbar(U,'A')
    if o['msum']: body+=fin(1)
    if o['stpair']:
        for d in (0,2): body+=conv(1,d,1)+conv(1,d+1,1)+store(1,d,0)+store(1,d+1,0)+store(1,d,1)+store(1,d+1,1)
    else:
        for d in range(4): body+=conv(1,d,1)+store(1,d,0)+store(1,d,1)
    post=[]
    if o['stamps']==3:
        post+=stamp(); post.append(I("s_nop 0",'other',wait={'VMALL'})); post+=stamp()
        post+=[raw("s_waitcnt lgkmcnt(0)"), salu(f"s_add_u32 s3, s2, s{sW}"), salu("s_cmp_lg_u32 s3, 133"), raw("s_cbranch_scc1 L_end"),
               salu("s_mov_b32 s8, s4"),salu("s_mov_b32 s9, s5"),salu("s_mov_b32 s10, 256"),salu("s_mov_b32 s11, 0x20000"), V("v_mov_b32",T,"0"), raw("s_mov_b64 exec, 1")]
        for j in range(1,len(stl)):
            post+=[salu(f"s_sub_u32 s3, s{50+4*j}, s50"),salu(f"s_sub_u32 s6, s{52+4*j}, s52"),V("v_mov_b32",T+2,"s3"),V("v_mov_b32",T+3,"s6"),
                   I(f"buffer_store_dwordx2 {vr(T+2,2)}, v{T}, s[8:11], 0 offen offset:{8*(j-1)}",'vst',[],[T,T+2,T+3])]
    elif o['stamps']:
        post+=stamp(); post.append(I("s_nop 0",'other',wait={'VMALL'})); post+=stamp()
        post+= [raw("s_waitcnt lgkmcnt(0)"), salu("s_mov_b32 s8, s4"),salu("s_mov_b32 s9, s5"),salu("s_mov_b32 s10, 0x100000"),salu("s_mov_b32 s11, 0x20000"),
                salu("s_lshl_b32 s3, s2, 11"), salu(f"s_lshr_b32 s6, s{sW}, 2"), salu("s_add_u32 s3, s3, s6"), V("v_mov_b32",T,"s3"), raw("s_mov_b64 exec, 1")]
        for j in range(2*len(stl)):
            post+=[V("v_mov_b32",T+2,f"s{50+2*j}"),V("v_mov_b32",T+3,f"s{51+2*j}"), I(f"buffer_store_dwordx2 {vr(T+2,2)}, v{T}, s[8:11], 0 offen offset:{8*j}",'vst',[],[T,T+2,T+3])]
        post.append(raw("s_mov_b64 exec, -1"))
    slow=[]
    if o['slow'] and not o['stamps']:
        from slowpath import slowpath
        slow=slowpath(locals())
    ins=insert_waits(pre+body+post+slow)
    ins,nn=fix_hazards(ins,verbose=o['verbose'])
    txt=[x.t if x.k=='label' else "    "+x.t for x in ins if x.t]
    hdr=open('cdna_kernels/%s.s.ref'%NAME).read().split('; Override')[0]
    out=hdr+f"; @launch grid=(256,1,1) block=(512,1,1) lds=131072\n.amdgcn_target \"amdgcn-amd-amdhsa--gfx950\"\n.text\n.globl {NAME}_kernel\n.p2align 8\n.type {NAME}_kernel,@function\n{NAME}_kernel:\n"
    out+="\n".join(txt)+"\nL_end:\n    s_endpgm\n"
    out+=f""".section .rodata,"a"
.p2align 6
.amdhsa_kernel {NAME}_kernel
  .amdhsa_next_free_vgpr 256
  .amdhsa_next_free_sgpr 102
  .amdhsa_accum_offset 256
  .amdhsa_group_segment_fixed_size 0
  .amdhsa_kernarg_size 48
  .amdhsa_user_sgpr_count 2
  .amdhsa_user_sgpr_kernarg_segment_ptr 1
  .amdhsa_system_sgpr_workgroup_id_x 1
.end_amdhsa_kernel
"""
    return out,len(ins),nn
if __name__=="__main__":
    path=sys.argv[1]; kw={}
    for s in sys.argv[2:]:
        k,v=s.split('='); kw[k]=float(v) if '.' in v else int(v)
    out,n,nn=gen(**kw); open(path,'w').write(out); print(path,"insts",n,"nops",nn)
```

```python
import re
class I:
    __slots__=('t','k','d','u','tag','wait','c','srcc','g','tagB')
    def __init__(s,t,k,d=(),u=(),tag=None,wait=None,c=None,srcc=()):
        s.t=t; s.k=k; s.d=frozenset(d); s.u=frozenset(u); s.tag=tag; s.wait=wait; s.srcc=frozenset(srcc); s.g=None; s.tagB=None
        s.c = c if c is not None else {'mfma':8,'trans':8,'valu':4,'perm':4,'ds':4,'vld':8,'dma':8,'vst':8,'salu':2,'other':2}.get(k,4)
def R(a,n=1): return list(range(a,a+n))
def vr(a,n=1): return f"v{a}" if n==1 else f"v[{a}:{a+n-1}]"
def mfma(D,A,B,C=None):
    c = '0' if C is None else vr(C,16)
    cu = [] if C is None else R(C,16)
    return I(f"v_mfma_f32_32x32x16_bf16 {vr(D,16)}, {vr(A,4)}, {vr(B,4)}, {c}",'mfma',R(D,16),R(A,4)+R(B,4)+cu,srcc=cu)
def mfma16(D,A,B,C=None):
    c = '0' if C is None else vr(C,4)
    cu = [] if C is None else R(C,4)
    return I(f"v_mfma_f32_16x16x32_bf16 {vr(D,4)}, {vr(A,4)}, {vr(B,4)}, {c}",'mfma',R(D,4),R(A,4)+R(B,4)+cu,srcc=cu)
def valu(t,d,u): return I(t,'valu',d,u)
def trans(t,d,u): return I(t,'trans',d,u)
def salu(t): return I(t,'salu')
def raw(t): return I(t,'other')

def insert_waits(ins):
    out=[]; lg=[]; vm={'A':[],'B':[]}; seen={'A':set(),'B':set()}; alltags={'A':set(),'B':set()}
    for x in ins:
        if x.k=='dma':
            for g in ('AB' if x.g is None else x.g): alltags[g].add(x.tagB if g=='B' and x.tagB else x.tag)
    for x in ins:
        gs='AB' if x.g is None else x.g
        if x.k=='reset':
            lg=[]; vm={'A':[],'B':[]}; out.append(x); continue
        if x.wait:
            for t in x.wait:
                if not isinstance(t,str):
                    assert t in alltags['A']|alltags['B'], t
                    for g in gs: assert t in seen[g] or t not in alltags[g], ('barrier waits on unissued dma',t,g)
        need_lg=None; need_vm=None; touched=x.d|x.u
        for i,(regs,tag) in enumerate(lg):
            if regs & touched: need_lg=len(lg)-1-i
        for g in gs:
            q=vm[g]
            for i,(regs,tag) in enumerate(q):
                if regs & touched or (x.wait and tag in x.wait): n=len(q)-1-i; need_vm=n if need_vm is None else min(need_vm,n)
            if x.wait and 'VMALL' in x.wait and q: need_vm=0
        if x.wait and 'LGALL' in x.wait and lg: need_lg=0
        parts=[]
        if need_vm is not None:
            need_vm=min(need_vm,63); parts.append(f"vmcnt({need_vm})")
            for g in gs: vm[g]=vm[g][max(len(vm[g])-need_vm,0):] if need_vm else []
        if need_lg is not None:
            assert x.g is None
            need_lg=min(need_lg,15); parts.append(f"lgkmcnt({need_lg})"); lg=lg[len(lg)-need_lg:] if need_lg else []
        if parts: out.append(I("s_waitcnt "+" ".join(parts),'wait'))
        out.append(x)
        if x.k=='ds': assert x.g is None; lg.append((x.d,x.tag))
        elif x.k in('vld','dma','vst'):
            for g in gs:
                tg=x.tagB if g=='B' and x.tagB else x.tag
                vm[g].append((x.d if x.k=='vld' else frozenset(),tg)); assert len(vm[g])<=63
                if x.k=='dma': seen[g].add(tg)
    return out

def states(x):
    if x.k in ('label','reset','comment'): return 0
    m=re.match(r's_nop (\d+)',x.t)
    return int(m.group(1))+1 if m else 1

def fix_hazards(ins, verbose=False):
    out=[]; nn=0
    VAL=('valu','trans','perm','dot')
    for x in ins:
        need=0; dist=0
        for p in reversed(out):
            if dist>=20: break
            req=0
            if p.k=='mfma':
                big=len(p.d)==16; r1=12 if big else 8
                if x.k=='mfma':
                    if (p.d & (x.u - x.srcc)): req=r1
                    elif (p.d & x.srcc) and p.d!=x.srcc: req=r1-2
                    elif (p.d & x.d) and not (p.d & x.srcc): req=r1
                elif (p.d & (x.u|x.d)): req=r1
                if x.k in VAL and (p.srcc & x.d): req=max(req,7 if big else 3)
            elif p.k in VAL:
                if x.k=='mfma' and (p.d & x.u): req=2
                if x.k=='perm' and (p.d & (x.u|x.d)): req=2
                if p.k=='trans' and x.k in ('valu','perm') and (p.d & x.u): req=max(req,1)
                if p.k=='dot' and (p.d & (x.u|x.d)): req=max(req,3)
                if x.k=='rfl' and (p.d & x.u): req=max(req,1)
            elif p.k=='vst':
                if (p.u & x.d): req=2
            elif p.k=='salu':
                if 'm0' in p.t.split(',')[0] and x.k=='dma': req=1
            need=max(need,req-dist)
            dist+=states(p)
        if need>0:
            nn+=1
            if verbose: print("nop",need,"before",x.t)
            out.append(I(f"s_nop {need-1}",'other'))
        out.append(x)
    return out,nn

def weave(mf, fill, lead=0):
    n=len(mf)
    gaps=[[] for _ in range(n+1)]
    total=sum(f[0].c for f in fill)
    per = total/ max(n,1)
    cum=0; g=0
    his=[f[2] for f in fill]
    for i in range(len(fill)-2,-1,-1): his[i]=min(his[i],his[i+1])
    for i,(x,lo,hi) in enumerate(fill):
        want = int((cum + x.c*0.5)/per)+1-lead if per>0 else 1
        want=max(want,lo,g); want=min(want,his[i],n)
        assert want>=lo and want>=g, (x.t,lo,hi,g,want)
        g=want; gaps[g].append(x); cum+=x.c
    out=[]
    for g in range(n+1):
        if g>0: out.append(mf[g-1])
        out+=gaps[g]
    return out

def merge(*streams):
    items=[]
    for si,(st,w0,w1) in enumerate(streams):
        tot=sum(f[0].c for f in st) or 1
        cum=0
        for j,f in enumerate(st):
            pos = w0+(w1-w0)*(cum+f[0].c*0.5)/tot
            pos=max(pos,f[1]); pos=min(pos,f[2]+0.99)
            items.append([pos,si,j,f]); cum+=f[0].c
        last=-1
        for it in items:
            if it[1]==si:
                it[0]=max(it[0],last); last=it[0]
    items.sort(key=lambda z:(z[0],z[1],z[2]))
    return items
def place(mf, streams):
    n=len(mf); gaps=[[] for _ in range(n+1)]
    for pos,si,j,f in merge(*streams):
        g=min(max(int(pos),0),n)
        assert f[1]<=g<=max(f[2],f[1]), (f[0].t,f[1],f[2],g)
        gaps[g].append(f[0])
    out=[]
    for g in range(n+1):
        if g>0: out.append(mf[g-1])
        out+=gaps[g]
    return out
```

```python
import sys, math, struct
from asmlib import *
NAME="standalone__mha_softmax__near_ridge"
def f2u(x): return struct.unpack('<I',struct.pack('<f',x))[0]
DEF=dict(nr=10, dppst=1, shift=1, pv=3, pvord=0, hackst=0, bq0=1, nb=0, bqfirst=1, bqpos=0, lag=2, bq=0, lg0=1, dmam=0, nodma=0, nfr=14, dma_e=3, dma_en=8, dma_s=2, pm1=0, pm2=1, pswitch=8, sidetail=3, cvspill=0, pkcv=0, presc=0, msum=1, ps0=12, nt_dma=1, stpair=0, npre=4, maxdma=4, stamps=0, PD=6, BOFF=4, early=6, prio=0, qn0=3, qn1=11, st0=18, st1=30, nt_st=3, nt_ld=1, share=1, slow=1, force_slow=0, pkadd=0, dmaspread=1.0, m16=1, verbose=0, nosm=0, nold=0)
POL=['',' nt',' sc1',' sc0 sc1',' nt sc1',' sc0 nt sc1',' sc0 nt']
QORD=[0,2,1,3,4,6,5,7]
def gen(**kw):
    o=dict(DEF); o.update(kw); M16=o['m16']; G=2 if M16 else 1
    O=0; QA=64; QB=96; S=[128,144]; P=[160,168]; FR=176; NFR=8
    NKA=4 if M16 else 8; KAD=208; VAD=KAD+NKA; DK=220; DV=221; QO=[222,223]; MC=[224,225]; L=[[226,228],[252,254]]; LA=[226,252]; RI=[230,232]; T=234; CI=[240,244]; ONE=248; sC2=35
    sQ=[8,12]; sK=16; sV=20; sO=[24,28]; sC=32; sW=33; sOFF=34; sFLAG=36
    pre=[]; a=pre.append
    def V(op,d,*src):
        regs=[x for x in src if isinstance(x,int)]
        return valu(f"{op} v{d}, "+", ".join(f"v{x}" if isinstance(x,int) else x for x in src),[d],regs)
    a(raw("s_cmp_ge_u32 s2, 256")); a(raw("s_cbranch_scc1 L_end"))
    a(raw("s_load_dwordx4 s[40:43], s[0:1], 0")); a(raw("s_load_dwordx4 s[44:47], s[0:1], 16")); a(raw(f"s_load_dwordx2 s[4:5], s[0:1], {32 if o['stamps']==3 else 40}"))
    stl=[]
    def stamp():
        n=len(stl); stl.append(n); r=50+4*n; assert r+4<=102
        return [raw(f"s_memtime s[{r}:{r+1}]"),raw(f"s_memrealtime s[{r+2}:{r+3}]")]
    if o['stamps']: pre+=stamp()
    l=128; wv=129; h=130; l16=131; l32=132; t0=133; t1=134; q4=135; t2=136; g4=137; pg=138
    a(V("v_and_b32",l,"63",0)); a(V("v_lshrrev_b32",wv,"6",0)); a(raw("s_nop 0"))
    a(I(f"v_readfirstlane_b32 s{sW}, v{wv}",'rfl',[],[wv]))
    if o['share']:
        a(salu("s_and_b32 s3, s2, 7")); a(salu("s_lshr_b32 s6, s2, 4")); a(salu("s_lshl_b32 s3, s3, 4")); a(salu("s_add_u32 s3, s3, s6"))
        a(salu("s_lshr_b32 s7, s2, 3")); a(salu("s_and_b32 s7, s7, 1"))
    else:
        a(salu("s_lshr_b32 s3, s2, 1")); a(salu("s_and_b32 s7, s2, 1"))
    a(V("v_lshrrev_b32",h,"5",l)); a(V("v_and_b32",l16,"15",l)); a(V("v_and_b32",l32,"31",l)); a(V("v_lshrrev_b32",g4,"4",l))
    a(V("v_lshrrev_b32",t0,"4",0)); a(V("v_and_b32",t1,"15",t0)); a(V("v_xor_b32",t1,t1,l16)); a(V("v_lshlrev_b32",t1,"4",t1)); a(V("v_lshl_add_u32",DK,t0,"8",t1))
    if M16: a(V("v_and_b32",t1,"7",t0)); a(V("v_lshlrev_b32",t1,"1",t1))
    else: a(V("v_and_b32",t1,"3",t0)); a(V("v_lshlrev_b32",t1,"2",t1))
    a(V("v_xor_b32",t1,t1,l16)); a(V("v_lshlrev_b32",t1,"4",t1)); a(V("v_lshl_add_u32",DV,t0,"8",t1))
    if M16:
        a(V("v_and_b32",pg,"1",g4)); a(V("v_lshl_add_u32",pg,pg,"1",h))
        a(V("v_lshlrev_b32",t0,"4",wv)); a(V("v_add_u32",t0,t0,l16)); a(V("v_lshlrev_b32",t0,"9",t0)); a(V("v_lshl_add_u32",t0,pg,"4",t0))
    else:
        a(V("v_lshlrev_b32",t0,"5",wv)); a(V("v_add_u32",t0,t0,l32)); a(V("v_lshlrev_b32",t0,"8",t0)); a(V("v_lshl_add_u32",t0,h,"4",t0))
    a(salu("s_lshl_b32 s6, s7, 16")); a(V("v_add_u32",QO[0],"s6",t0)); a(salu("s_xor_b32 s6, s6, 0x10000")); a(V("v_add_u32",QO[1],"s6",t0))
    a(V("v_and_b32",t1,"4",l)); a(V("v_mul_u32_u24",t1,"496",t1))
    for p in range(2): a(V("v_sub_u32",240+p,QO[p],t1))
    a(raw("s_waitcnt lgkmcnt(0)"))
    if o['stamps']==2: pre+=stamp()
    a(salu("s_mul_i32 s6, s3, 0x40000"))
    for sr,p in ((sK,42),(sV,44)):
        a(salu(f"s_add_u32 s{sr}, s{p}, s6")); a(salu(f"s_addc_u32 s{sr+1}, s{p+1}, 0")); a(salu(f"s_mov_b32 s{sr+2}, 0x40000")); a(salu(f"s_mov_b32 s{sr+3}, 0x20000"))
    a(salu(f"s_lshl_b32 s{sW}, s{sW}, 10"))
    a(salu(f"s_cmp_ge_u32 s{sW}, 4096")); a(raw("s_cselect_b64 vcc, -1, 0"))
    nlab=[0]
    def only(grp,lst):
        if not lst: return []
        nlab[0]+=1; lb=f"L_g{nlab[0]}"
        for x in lst: x.g=grp
        return [raw(f"s_cbranch_vcc{'nz' if grp=='A' else 'z'} {lb}")]+lst+[I(lb+":",'label')]
    LAG=o['lag']; NR=o['nr']; VB=NR*8192; HB=(NR//2)*8192; SO=[240,241]
    nt=POL[o['nt_ld']]
    a(salu(f"s_cselect_b32 s48, {LAG*8192}, 0")); a(salu(f"s_cselect_b32 s49, {VB}, 0")); a(salu(f"s_add_u32 s35, s{sW}, s48")); a(salu("s_sub_u32 s49, s35, s49"))
    def dma2(kind,U):
        if not LAG: return dma(kind,U)
        if not o['shift']: return only('A',dma(kind,U)+dma(kind,U,4096))
        if U+LAG>=32: return only('A',dma(kind,U))
        r=dma(kind,U); r[2].tagB=(kind,U+LAG)
        return [salu(f"s_add_u32 m0, s{35 if U%NR+LAG<NR else 49}, {(0 if kind=='K' else VB)+(U%NR)*8192}"), salu(f"s_add_u32 s{sOFF}, s48, {U*8192}"), r[2]]
    def dma(kind,U,ex=0):
        base=(0 if kind=='K' else VB)+(U%NR)*8192+ex; sr=sK if kind=='K' else sV
        return [salu(f"s_add_u32 m0, s{sW}, {base}"), salu(f"s_mov_b32 s{sOFF}, {U*8192+ex}"),
                I(f"buffer_load_dwordx4 v{DK if kind=='K' else DV}, s[{sr}:{sr+3}], s{sOFF} offen{POL[o['nt_dma']]} lds",'dma',[],[DK,DV],tag=(kind,U))]
    pre+=dma('K',0)+dma('K',1)
    if o['stamps']==2: pre+=stamp()
    a(salu("s_mul_i32 s6, s3, 253952"))
    for srs,p in ((sQ,40),(sO,46)):
        a(salu(f"s_add_u32 s{srs[0]}, s{p}, s6")); a(salu(f"s_addc_u32 s{srs[0]+1}, s{p+1}, 0")); a(salu(f"s_mov_b32 s{srs[0]+2}, 126976")); a(salu(f"s_mov_b32 s{srs[0]+3}, 0x20000"))
        a(salu(f"s_add_u32 s{srs[1]}, s{srs[0]}, 126976")); a(salu(f"s_addc_u32 s{srs[1]+1}, s{srs[0]+1}, 0")); a(salu(f"s_mov_b32 s{srs[1]+2}, 126976")); a(salu(f"s_mov_b32 s{srs[1]+3}, 0x20000"))
    def qload(p,s):
        d=(QA,QB)[p]+4*s; off=(s%2)*256+(s//2)*64 if M16 else s*32
        return I(f"buffer_load_dwordx4 {vr(d,4)}, v{QO[p]}, s[{sQ[p]}:{sQ[p]+3}], 0 offen offset:{off}{nt}",'vld',R(d,4),[QO[p]])
    pre+=only('A',[qload(0,s) for s in QORD]) if LAG and o['bq0']!=2 else [qload(0,s) for s in QORD]
    if o['stamps']==2: pre+=stamp()
    issued={('K',0),('K',1)}
    order=[(kd,u) for U in range(2,9) for kd,u in (('V',U-2),('K',U)) if u<8]
    for kd,u in order[:o['npre']]: pre+=dma(kd,u); issued.add((kd,u))
    if LAG and o['bq0']==1: pre+=only('B',[qload(0,s) for s in QORD])
    bl=[]
    for kd,u in order[o['npre']:o['npre']+o['nb']]: bl+=dma(kd,u)+dma(kd,u,-4096); issued.add((kd,u))
    if o['stamps']==2:
        pre+=stamp(); a(I("s_nop 0",'other',wait={('K',0)})); pre+=stamp(); a(I("s_nop 0",'other',u=[QA])); pre+=stamp(); a(I("s_nop 0",'other',u=[QA+28])); pre+=stamp()
    a(V("v_lshrrev_b32",q4,"2",l16))
    if M16:
        for s in range(4):
            a(V("v_add_u32",t0,str(4*s),pg)); a(V("v_xor_b32",t0,t0,l16)); a(V("v_lshlrev_b32",t0,"4",t0)); a(V("v_lshl_add_u32",KAD+s,l16,"8",t0))
        a(V("v_lshrrev_b32",t1,"2",l))
        a(V("v_lshlrev_b32",t0,"8",t1)); a(V("v_and_b32",t2,"3",l)); a(V("v_lshl_add_u32",t0,t2,"3",t0)); a(V("v_add_u32",t0,str(VB),t0))
        a(V("v_and_b32",t1,"7",t1))
        for d in range(8): a(V("v_xor_b32",t2,str(d),t1)); a(V("v_lshl_add_u32",VAD+d,t2,"5",t0))
    else:
        for s in range(8):
            a(V("v_add_u32",t0,str(2*s),h)); a(V("v_xor_b32",t0,t0,l16)); a(V("v_lshlrev_b32",t0,"4",t0)); a(V("v_lshl_add_u32",KAD+s,l32,"8",t0))
        a(V("v_lshl_add_u32",t0,h,"2",q4)); a(V("v_lshlrev_b32",t0,"8",t0)); a(V("v_and_b32",t1,"16",l)); a(V("v_lshl_add_u32",t0,t1,"1",t0))
        a(V("v_and_b32",t1,"1",l)); a(V("v_lshl_add_u32",t0,t1,"4",t0)); a(V("v_and_b32",t1,"2",l)); a(V("v_lshl_add_u32",t0,t1,"2",t0))
        a(V("v_add_u32",t0,"0x10000",t0))
        for d in range(4): a(V("v_xor_b32",t2,str(d),q4)); a(V("v_lshl_add_u32",VAD+d,t2,"6",t0))
    c=(128**-0.5)*math.log2(math.e)
    a(salu(f"s_mov_b32 s{sC}, 0x{f2u(c):08x}"))
    chi=f2u(c)>>16; clo=f2u(c-struct.unpack('<f',struct.pack('<I',chi<<16))[0]); clo=(clo+0x8000)>>16
    def presc(p,s):
        r=[]
        for k in range(4):
            x=(QA,QB)[p]+4*s+k; t=T+2*(k%2)
            if o['presc']==1:
                r+=[I(f"v_dot2_f32_bf16 v{t}, v{x}, s{sC2}, 0 op_sel:[0,0,0] op_sel_hi:[0,1,0]",'dot',[t],[x]), I(f"v_dot2_f32_bf16 v{t+1}, v{x}, s{sC2}, 0 op_sel:[1,0,0] op_sel_hi:[1,1,0]",'dot',[t+1],[x])]
            else:
                r+=[V("v_lshlrev_b32",t,"16",x),V("v_and_b32",t+1,"0xffff0000",x),V("v_mul_f32",t,f"s{sC}",t),V("v_mul_f32",t+1,f"s{sC}",t+1)]
            if k>0: r.append(V("v_cvt_pk_bf16_f32",x-1,T+2*((k-1)%2),T+2*((k-1)%2)+1))
        r.append(V("v_cvt_pk_bf16_f32",(QA,QB)[p]+4*s+3,T+2,T+3))
        return r
    if o['msum']:
        for k in range(4): a(V("v_mov_b32",ONE+k,"0x3f803f80"))
    else:
        for p in range(2):
            for x in L[p]: a(V("v_mov_b32",x,"0")); a(V("v_mov_b32",x+1,"0"))

    if o['prio']:
        a(salu(f"s_cmp_ge_u32 s{sW}, 4096")); a(raw("s_cbranch_scc0 L_prio")); a(raw("s_setprio 1")); a(I("L_prio:",'label'))
    NU=32; NFR=o['nfr']; FRB=[FR+4*k for k in range(8)]+[144,148,152,156,168,172]; S0=S[0]; P0=P[0]
    def perm(n,x,y): return I(f"v_permlane{n}_swap_b32 v{x}, v{y}",'perm',[x,y],[x,y])
    def xred(op,regs,tmps):
        r=[]
        for n in (16,32): r+=[V("v_mov_b32",t,x) for x,t in zip(regs,tmps)]+[perm(n,x,t) for x,t in zip(regs,tmps)]+[V(op,x,x,t) for x,t in zip(regs,tmps)]
        return r
    def bias(U): return HB if (NR>8 and U%NR>=NR//2) else 0
    def rebias(regs,U):
        d=bias(U)-bias(U-1) if U>0 else 0
        return [V("v_add_u32" if d>0 else "v_subrev_u32",x,str(abs(d)),x) for x in regs] if d else []
    def kread(U,s): ad=KAD+s%4; fb=FRB[s]; return I(f"ds_read_b128 {vr(fb,4)}, v{ad} offset:{(U%NR)*8192-bias(U)+(s//4)*4096}",'ds',R(fb,4),[ad])
    def vfb(j): return FRB[(8+j)%NFR]
    def vread(U,j,u2): fb=vfb(j)+2*u2; return I(f"ds_read_b64_tr_b16 {vr(fb,2)}, v{VAD+j} offset:{(U%NR)*8192-bias(U)+u2*4096}",'ds',R(fb,2),[VAD+j])
    bs=[U for U in range(-1,NU-1) if U<o['early'] or (U-o['early'])%2==1]
    def bwait(U):
        nx=[x for x in bs if x>U]; U2=nx[0] if nx else NU
        return {('K',x) for x in range(U+2 if U>=0 else 0,min(U2+2,NU))}|{('V',x) for x in range(max(U,0),min(U2,NU))}
    def cbar(U,grp):
        if grp=='B': U+=LAG
        return only(grp,[I("s_barrier",'other',wait=bwait(U))]) if U in bs else []
    extra={U:[] for U in range(-1,NU+1)}
    mextra={U:[] for U in range(-1,NU+2)}
    vextra={U:[] for U in range(-1,NU+1)}
    preiss=set(issued); mainiss=[]
    for U in range(0,NU):
        b=max(x for x in bs if x<=U-1)
        todo=sorted([(X-1 if kd=='K' else X+0.5,kd,X) for X in range(NU) for kd in 'KV' if (kd,X) not in issued and X-NR<=max((b if kd=='K' else b-1)-LAG,-1)])
        for _,kd,X in todo[:(o['dma_e'] if U<o['dma_en'] else o['dma_s'])]: issued.add((kd,X)); mainiss.append((kd,X,U)); (mextra if o['dmam'] else extra)[U+o['dmam']].append(dma2(kd,X) if not (o['nodma'] and X>=8) else [I("s_nop 0",'dma',tag=(kd,X))])
    assert len(issued)==2*NU
    if LAG and o['shift']:
        Bhave=set(preiss)|{(kd,X+LAG) for kd,X,U in mainiss}
        for kd,X in sorted([(kd,X) for kd in 'KV' for X in range(NU) if (kd,X) not in Bhave],key=lambda z:z[1]-1 if z[0]=='K' else z[1]+0.5): assert X<NR; bl+=dma(kd,X)
        for kd,X,U in mainiss:
            b2=max(x for x in bs if x<=U+LAG); assert X+LAG-NR<=max((b2 if kd=='K' else b2-1)-LAG,-1),(kd,X,U)
    for j in range(4): extra[o['qn0']+(o['qn1']-o['qn0'])*j//4].append([qload(1,QORD[2*j]),qload(1,QORD[2*j+1])])
    if o['presc']:
        for s in range(8): vextra[o['ps0']+(16-o['ps0'])*s//8]+=presc(1,s)
    nts=POL[o['nt_st']]
    def fin(p):
        l0,l1=LA if o['msum'] else L[p]
        thr=V("v_mov_b32",T+4,f"0x{f2u(2.0**(-1 if o['force_slow'] else 30)):08x}")
        r=[] if o['msum'] else xred("v_add_f32",[l0,l1],[T+2,T+3])
        return r+[trans(f"v_rcp_f32 v{RI[0]}, v{l0}",[RI[0]],[l0]),trans(f"v_rcp_f32 v{RI[1]}, v{l1}",[RI[1]],[l1]),thr,V("v_add_f32",T+5,l0,l1),
                  valu(f"v_cmp_nlt_f32 s[{sFLAG+2*p}:{sFLAG+2*p+1}], v{T+5}, v{T+4}",[],[T+5,T+4])]
    def conv(p,d,pk):
        X=(QA,QB)[p]; cv=[]; pend=None
        for k in range(8):
            r=O+16*d+2*k; qb=(k//2)%2; ri=RI[qb]; x=X+8*d+4*qb+2*(k//4)+k%2
            if pk: cv.append(valu(f"v_pk_mul_f32 {vr(r,2)}, {vr(r,2)}, {vr(ri,2)} op_sel_hi:[1,0]",[r,r+1],[r,r+1,ri]))
            else: cv+=[V("v_mul_f32",r,r,ri),V("v_mul_f32",r+1,r+1,ri)]
            if pend: cv.append(pend)
            pend=V("v_cvt_pk_bf16_f32",x,r,r+1)
        return cv+[pend]
    def store(p,d,g):
        x=(QA,QB)[p]+8*d+4*g
        if o['hackst']: return [V("v_and_b32",T,"0xffffe000",QO[p]),valu(f"v_mbcnt_lo_u32_b32 v{T+1}, -1, 0",[T+1],[]),valu(f"v_mbcnt_hi_u32_b32 v{T+1}, -1, v{T+1}",[T+1],[T+1]),V("v_lshl_add_u32",T,T+1,"4",T),V("v_add_u32",T,str((2*d+g)*1024),T),
            I(f"buffer_store_dwordx4 {vr(x,4)}, v{T}, s[{sO[p]}:{sO[p]+3}], 0 offen{nts}",'vst',[],R(x,4)+[T],tag=('O',p))]
        return [perm(16,x,x+2),perm(16,x+1,x+3),I(f"buffer_store_dwordx4 {vr(x,4)}, v{QO[p]}, s[{sO[p]}:{sO[p]+3}], 0 offen offset:{d*64+256*g}{nts}",'vst',[],R(x,4)+[QO[p]],tag=('O',p))]
    def store2(p,e,qb,X=None,pol=None):
        X=(QA,QB)[p] if X is None else X; A=X+16*e+4*qb; B=A+8; pol=nts if pol is None else pol
        r=[perm(16,A,A+2),perm(16,A+1,A+3),perm(16,B,B+2),perm(16,B+1,B+3)]+[V("v_mov_b32",T+k,B+k) for k in range(4)]
        r+=[I(f"v_mov_b32_dpp v{B+k}, v{A+k} row_shl:4 row_mask:0xf bank_mask:0x5",'perm',[B+k],[A+k,B+k]) for k in range(4)]
        r+=[I(f"v_mov_b32_dpp v{A+k}, v{T+k} row_shr:4 row_mask:0xf bank_mask:0xa",'perm',[A+k],[T+k,A+k]) for k in range(4)]
        st=[I(f"buffer_store_dwordx4 {vr(x,4)}, v{SO[p]}, s[{sO[p]}:{sO[p]+3}], 0 offen offset:{128*e+256*qb+2048*i}{pol}",'vst',[],R(x,4)+[SO[p]],tag=('O',p)) for i,x in ((1,B),(0,A))]
        return r,st
    for j in range(4 if o['dppst'] else 0):
        r,st=store2(0,j//2,j%2); w=o['st1']-o['st0']
        vextra[o['st0']+w*(2*j)//8]+=r+st[:1]; vextra[o['st0']+w*(2*j+1)//8]+=st[1:]
    for j in range(0 if o['dppst'] else 8):
        if o['stpair']: vextra[o['st0']+(o['st1']-o['st0'])*(j//2)//4]+=store(0,(j//4)*2+j%2,(j//2)%2)
        else: vextra[o['st0']+(o['st1']-o['st0'])*j//8]+=store(0,j//2,j%2)
    body=[I("s_barrier",'other',wait=bwait(-1))]+[kread(0,s) for s in range(8)]
    if LAG:
        qb_=[] if o['bq0'] else [qload(0,s) for s in QORD]
        for U in range(-LAG,0):
            if U+LAG==o['bqpos']: body+=only('B',qb_+bl if o['bqfirst'] else bl+qb_)
            body+=cbar(U,'B')
        if o['bq0']!=2 or bl: body+=only('A',[I("s_nop 0",'other',u=R(QA,32))])+only('B',[I("s_nop 0",'other',u=R(QA,32))])
    if o['presc']:
        for s in range(8): body+=presc(0,s)
    for U in range(NU+1):
        if o['stamps']==4:
            if U in (22,23,24): body+=stamp()
        elif o['stamps'] and U in ([0,1,5,9,13,17,21,25,29,32] if o['stamps']==1 else [0,1,5] if o['stamps']==2 else [0,1,9,17,25,32]): body+=stamp()
        body.append(I(f"s_setprio {o['pm1']}",'other',wait={'LGALL'} if o['lg0'] else None))
        ms=[]; rd=[vread(U-1,j,u2) for j in range(8) for u2 in range(2)] if U>=1 else []
        npre_v=0
        if U<NU:
            q=(QA,QB)[U//16]
            for s in range(8):
                kt,ds=s//4,s%4
                for qb in range(2): dd=S0+8*qb+4*kt; ms.append(mfma16(dd,FRB[s],q+4*(2*ds+qb),(CI[qb] if o['presc'] and U%16>=1 else None) if ds==0 else dd))
        else: rd=[]
        mx=[]
        if U==17 and o['cvspill']: mx=conv(0,3,0)
        for i,m in enumerate(ms):
            body.append(m)
            if i==o['pswitch']: body.append(raw(f"s_setprio {o['pm2']}"))
            if rd: body.append(rd[i])
            if mx: body+=mx[i*len(mx)//16:(i+1)*len(mx)//16]
        if U>=1:
            first=(U-1)%16==0
            if o['msum']: body+=[mfma16(LA[qb],ONE,P0+4*qb,None if first else LA[qb]) for qb in range(2)]
            if o['pvord']:
                for qb in range(2):
                    for j in range(8): dd=O+8*j+4*qb; body.append(mfma16(dd,vfb(j),P0+4*qb,None if first else dd))
            for j in range(0 if o['pvord'] else 8):
                for qb in range(2): dd=O+8*j+4*qb; body.append(mfma16(dd,vfb(j),P0+4*qb,None if first else dd))
                if j%2==1 and j//2<len(mextra[U]): body+=mextra[U][j//2]
        body.append(raw(f"s_setprio {o['pv']}"))
        if o['stamps']==4 and U in (22,23): body+=stamp()
        body+=cbar(U,'B')
        if o['stamps']==4 and U in (22,23): body+=stamp()
        if U==NU: break
        s=S0; p=U//16; lst=(rebias(R(KAD,4),U+1) if U+1<NU else [])+rebias(R(VAD,8),U)
        if U%16==0:
            for k in (0,3,5): lst+=[V("v_max3_f32",T+i,*( [s+8*i,s+8*i+1,s+8*i+2] if k==0 else [T+i,s+8*i+k,s+8*i+k+1])) for i in range(2)]
            lst+=[V("v_max_f32",T+i,T+i,s+8*i+7) for i in range(2)]+xred("v_max_f32",[T,T+1],[T+2,T+3])
            lst+=[V("v_sub_f32",CI[i]+k,"0",T+i) for k in range(4) for i in range(2)] if o['presc'] else [V("v_mul_f32",MC[i],f"s{sC}",T+i) for i in range(2)]
        def fm(k):
            if o['presc']: return [V("v_add_f32",r,r,CI[k//4]) for r in (s+2*k,s+2*k+1)] if U%16==0 else []
            return [valu(f"v_fma_f32 v{r}, v{r}, s{sC}, -v{MC[k//4]}",[r],[r,MC[k//4]]) for r in (s+2*k,s+2*k+1)]
        def ex(r): return [trans(f"v_exp_f32 v{r}, v{r}",[r],[r])]
        def ad(k): la=L[p][k//4]; return [] if o['msum'] else [V("v_add_f32",la,la,s+2*k),V("v_add_f32",la+1,la+1,s+2*k+1)]
        def cvt(k): return [V("v_cvt_pk_bf16_f32",P0+k,s+2*k,s+2*k+1)]
        units=[fm(0)]
        for k in range(8):
            units+=[ex(s+2*k), fm(k+1) if k<7 else [], ex(s+2*k+1)]
            if k>0: units.append(ad(k-1))
            if k%2==0 and k>0: units.append(cvt(k-2)+cvt(k-1))
        units+=[ad(7),cvt(6)+cvt(7)]
        units=[u for u in units if u]
        side=([[kread(U+1,k)] for k in range(8)] if U+1<NU else [[vread(U,j,u2)] for j in range(8) for u2 in range(2)])
        ex_=extra[U]; sidem=[]
        for k in range(max(len(side),len(ex_))):
            if k<len(ex_): sidem.append(ex_[k])
            if k<len(side): sidem.append(side[k])
        nu=len(units)-o['sidetail']
        for k,u in enumerate(units):
            lst+=u
            if k<nu:
                for z in sidem[k*len(sidem)//nu:(k+1)*len(sidem)//nu]: lst+=z
        if U%16==15 and not o['msum']: lst+=[V("v_add_f32",x,x,x+1) for x in L[p]]+fin(p)
        if U==16:
            pr=fin(0) if o['msum'] else []
            for d in range(3 if o['cvspill'] else 4): pr+=conv(0,d,o['pkcv'])
            lst=lst+pr
        body+=lst+vextra[U]
        if o['stamps']==4 and U in (22,23): body+=stamp()
        body+=cbar(U,'A')
    if o['msum']: body+=fin(1)
    if o['dppst']:
        for e in range(2):
            body+=conv(1,2*e,1)+conv(1,2*e+1,1)
            for qb in range(2): r,st=store2(1,e,qb); body+=r+st
    elif o['stpair']:
        for d in (0,2): body+=conv(1,d,1)+conv(1,d+1,1)+store(1,d,0)+store(1,d+1,0)+store(1,d,1)+store(1,d+1,1)
    else:
        for d in range(4): body+=conv(1,d,1)+store(1,d,0)+store(1,d,1)
    post=[]
    if o['stamps']==3:
        post+=stamp(); post.append(I("s_nop 0",'other',wait={'VMALL'})); post+=stamp()
        post+=[raw("s_waitcnt lgkmcnt(0)"), salu(f"s_add_u32 s3, s2, s{sW}"), salu("s_cmp_lg_u32 s3, 133"), raw("s_cbranch_scc1 L_end"),
               salu("s_mov_b32 s8, s4"),salu("s_mov_b32 s9, s5"),salu("s_mov_b32 s10, 256"),salu("s_mov_b32 s11, 0x20000"), V("v_mov_b32",T,"0"), raw("s_mov_b64 exec, 1")]
        for j in range(1,len(stl)):
            post+=[salu(f"s_sub_u32 s3, s{50+4*j}, s50"),salu(f"s_sub_u32 s6, s{52+4*j}, s52"),V("v_mov_b32",T+2,"s3"),V("v_mov_b32",T+3,"s6"),
                   I(f"buffer_store_dwordx2 {vr(T+2,2)}, v{T}, s[8:11], 0 offen offset:{8*(j-1)}",'vst',[],[T,T+2,T+3])]
    elif o['stamps']:
        post+=stamp(); post.append(I("s_nop 0",'other',wait={'VMALL'})); post+=stamp()
        post+= [raw("s_waitcnt lgkmcnt(0)"), salu("s_mov_b32 s8, s4"),salu("s_mov_b32 s9, s5"),salu("s_mov_b32 s10, 0x100000"),salu("s_mov_b32 s11, 0x20000"),
                salu("s_lshl_b32 s3, s2, 11"), salu(f"s_lshr_b32 s6, s{sW}, 2"), salu("s_add_u32 s3, s3, s6"), V("v_mov_b32",T,"s3"), raw("s_mov_b64 exec, 1")]
        for j in range(2*len(stl)):
            post+=[V("v_mov_b32",T+2,f"s{50+2*j}"),V("v_mov_b32",T+3,f"s{51+2*j}"), I(f"buffer_store_dwordx2 {vr(T+2,2)}, v{T}, s[8:11], 0 offen offset:{8*j}",'vst',[],[T,T+2,T+3])]
        post.append(raw("s_mov_b64 exec, -1"))
    slow=[]
    if o['slow'] and not o['stamps']:
        from slowpath import slowpath
        slow=slowpath(locals())
    ins=insert_waits(pre+body+post+slow)
    ins,nn=fix_hazards(ins,verbose=o['verbose'])
    txt=[x.t if x.k=='label' else "    "+x.t for x in ins if x.t]
    hdr=open('cdna_kernels/%s.s.ref'%NAME).read().split('; Override')[0]
    out=hdr+f"; @launch grid=(256,1,1) block=(512,1,1) lds={2*VB}\n.amdgcn_target \"amdgcn-amd-amdhsa--gfx950\"\n.text\n.globl {NAME}_kernel\n.p2align 8\n.type {NAME}_kernel,@function\n{NAME}_kernel:\n"
    out+="\n".join(txt)+"\nL_end:\n    s_endpgm\n"
    out+=f""".section .rodata,"a"
.p2align 6
.amdhsa_kernel {NAME}_kernel
  .amdhsa_next_free_vgpr 256
  .amdhsa_next_free_sgpr 102
  .amdhsa_accum_offset 256
  .amdhsa_group_segment_fixed_size 0
  .amdhsa_kernarg_size 48
  .amdhsa_user_sgpr_count 2
  .amdhsa_user_sgpr_kernarg_segment_ptr 1
  .amdhsa_system_sgpr_workgroup_id_x 1
.end_amdhsa_kernel
"""
    return out,len(ins),nn
if __name__=="__main__":
    path=sys.argv[1]; kw={}
    for s in sys.argv[2:]:
        k,v=s.split('='); kw[k]=float(v) if '.' in v else int(v)
    out,n,nn=gen(**kw); open(path,'w').write(out); print(path,"insts",n,"nops",nn)
```

```python
import sys, math, struct
from asmlib import *
NAME="standalone__mha_softmax__near_ridge"
def f2u(x): return struct.unpack('<I',struct.pack('<f',x))[0]
DEF=dict(nb0=0, qsplit=0, qbp=0, sbp=2, nr=10, dppst=0, qf0=12, shift=1, pv=3, pvord=0, hackst=0, bq0=1, nb=0, bqfirst=1, bqpos=0, lag=2, bq=0, lg0=1, dmam=0, nodma=0, nfr=14, dma_e=3, dma_en=4, dma_s=2, pm1=0, pm2=1, pswitch=8, sidetail=3, cvspill=0, pkcv=0, presc=0, msum=1, ps0=12, nt_dma=1, stpair=0, npre=4, maxdma=4, stamps=0, PD=6, BOFF=4, early=6, prio=0, qn0=7, qn1=15, st0=18, st1=30, nt_st=3, nt_ld=1, share=1, slow=1, force_slow=0, pkadd=0, dmaspread=1.0, m16=1, verbose=0, nosm=0, nold=0)
POL=['',' nt',' sc1',' sc0 sc1',' nt sc1',' sc0 nt sc1',' sc0 nt']
QORD=[0,2,1,3,4,6,5,7]
def gen(**kw):
    o=dict(DEF); o.update(kw); M16=o['m16']; G=2 if M16 else 1
    O=0; QA=64; QB=96; S=[128,144]; P=[160,168]; FR=176; NFR=8
    NKA=4 if M16 else 8; KAD=208; VAD=KAD+NKA; DK=220; DV=221; QO=[222,223]; MC=[224,225]; L=[[226,228],[252,254]]; LA=[226,252]; RI=[230,232]; T=234; CI=[244,248]; ONE=248; sC2=35
    sQ=[8,12]; sK=16; sV=20; sO=[24,28]; sC=32; sW=33; sOFF=34; sFLAG=36
    pre=[]; a=pre.append
    def V(op,d,*src):
        regs=[x for x in src if isinstance(x,int)]
        return valu(f"{op} v{d}, "+", ".join(f"v{x}" if isinstance(x,int) else x for x in src),[d],regs)
    a(raw("s_cmp_ge_u32 s2, 256")); a(raw("s_cbranch_scc1 L_end"))
    a(raw("s_load_dwordx4 s[40:43], s[0:1], 0")); a(raw("s_load_dwordx4 s[44:47], s[0:1], 16")); a(raw(f"s_load_dwordx2 s[4:5], s[0:1], {32 if o['stamps']==3 else 40}"))
    stl=[]
    def stamp():
        n=len(stl); stl.append(n); r=50+4*n; assert r+4<=102
        return [raw(f"s_memtime s[{r}:{r+1}]"),raw(f"s_memrealtime s[{r+2}:{r+3}]")]
    if o['stamps']: pre+=stamp()
    l=128; wv=129; h=130; l16=131; l32=132; t0=133; t1=134; q4=135; t2=136; g4=137; pg=138
    a(V("v_and_b32",l,"63",0)); a(V("v_lshrrev_b32",wv,"6",0)); a(raw("s_nop 0"))
    a(I(f"v_readfirstlane_b32 s{sW}, v{wv}",'rfl',[],[wv]))
    if o['share']:
        a(salu("s_and_b32 s3, s2, 7")); a(salu("s_lshr_b32 s6, s2, 4")); a(salu("s_lshl_b32 s3, s3, 4")); a(salu("s_add_u32 s3, s3, s6"))
        a(salu("s_lshr_b32 s7, s2, 3")); a(salu("s_and_b32 s7, s7, 1"))
    else:
        a(salu("s_lshr_b32 s3, s2, 1")); a(salu("s_and_b32 s7, s2, 1"))
    a(V("v_lshrrev_b32",h,"5",l)); a(V("v_and_b32",l16,"15",l)); a(V("v_and_b32",l32,"31",l)); a(V("v_lshrrev_b32",g4,"4",l))
    a(V("v_lshrrev_b32",t0,"4",0)); a(V("v_and_b32",t1,"15",t0)); a(V("v_xor_b32",t1,t1,l16)); a(V("v_lshlrev_b32",t1,"4",t1)); a(V("v_lshl_add_u32",DK,t0,"8",t1))
    if M16: a(V("v_and_b32",t1,"7",t0)); a(V("v_lshlrev_b32",t1,"1",t1))
    else: a(V("v_and_b32",t1,"3",t0)); a(V("v_lshlrev_b32",t1,"2",t1))
    a(V("v_xor_b32",t1,t1,l16)); a(V("v_lshlrev_b32",t1,"4",t1)); a(V("v_lshl_add_u32",DV,t0,"8",t1))
    if M16:
        a(V("v_and_b32",pg,"1",g4)); a(V("v_lshl_add_u32",pg,pg,"1",h))
        a(V("v_lshrrev_b32",t0,"2",0)); a(V("v_lshlrev_b32",t0,"9",t0)); a(V("v_and_b32",t1,"3",l)); a(V("v_lshl_add_u32",t0,t1,"4",t0))
        a(V("v_lshl_add_u32",240,l16,"2",pg)); a(V("v_lshlrev_b32",240,"2",240))
        a(V("v_and_b32",t2,"1",l)); a(V("v_lshlrev_b32",t2,"7",t2)); a(V("v_and_b32",t1,"2",l)); a(V("v_lshl_add_u32",t2,t1,"5",t2)); a(V("v_and_b32",t1,"60",l)); a(V("v_add_u32",241,t2,t1))
    else:
        a(V("v_lshlrev_b32",t0,"5",wv)); a(V("v_add_u32",t0,t0,l32)); a(V("v_lshlrev_b32",t0,"8",t0)); a(V("v_lshl_add_u32",t0,h,"4",t0))
    a(salu("s_lshl_b32 s6, s7, 16")); a(V("v_add_u32",QO[0],"s6",t0)); a(salu("s_xor_b32 s6, s6, 0x10000")); a(V("v_add_u32",QO[1],"s6",t0))
    a(V("v_lshlrev_b32",t0,"4",wv)); a(V("v_add_u32",t0,t0,l16)); a(V("v_lshlrev_b32",t0,"9",t0)); a(V("v_lshl_add_u32",t0,pg,"4",t0))
    a(V("v_add_u32",243,"s6",t0)); a(V("v_xor_b32",242,"0x10000",243)); QD=[242,243]
    a(raw("s_waitcnt lgkmcnt(0)"))
    if o['stamps']==2: pre+=stamp()
    a(salu("s_mul_i32 s6, s3, 0x40000"))
    for sr,p in ((sK,42),(sV,44)):
        a(salu(f"s_add_u32 s{sr}, s{p}, s6")); a(salu(f"s_addc_u32 s{sr+1}, s{p+1}, 0")); a(salu(f"s_mov_b32 s{sr+2}, 0x40000")); a(salu(f"s_mov_b32 s{sr+3}, 0x20000"))
    a(salu(f"s_lshl_b32 s{sW}, s{sW}, 10"))
    a(salu(f"s_cmp_ge_u32 s{sW}, 4096")); a(raw("s_cselect_b64 vcc, -1, 0"))
    nlab=[0]
    def only(grp,lst):
        if not lst: return []
        nlab[0]+=1; lb=f"L_g{nlab[0]}"
        for x in lst: x.g=grp
        return [raw(f"s_cbranch_vcc{'nz' if grp=='A' else 'z'} {lb}")]+lst+[I(lb+":",'label')]
    LAG=o['lag']; NR=o['nr']; VB=NR*8192; HB=(NR//2)*8192; SO=[240,241]
    nt=POL[o['nt_ld']]
    a(salu(f"s_cselect_b32 s48, {LAG*8192}, 0")); a(salu(f"s_cselect_b32 s49, {VB}, 0")); a(salu(f"s_add_u32 s35, s{sW}, s48")); a(salu("s_sub_u32 s49, s35, s49"))
    def dma2(kind,U):
        if not LAG: return dma(kind,U)
        if not o['shift']: return only('A',dma(kind,U)+dma(kind,U,4096))
        if U+LAG>=32: return only('A',dma(kind,U))
        r=dma(kind,U); r[2].tagB=(kind,U+LAG)
        return [salu(f"s_add_u32 m0, s{35 if U%NR+LAG<NR else 49}, {(0 if kind=='K' else VB)+(U%NR)*8192}"), salu(f"s_add_u32 s{sOFF}, s48, {U*8192}"), r[2]]
    def dma(kind,U,ex=0):
        base=(0 if kind=='K' else VB)+(U%NR)*8192+ex; sr=sK if kind=='K' else sV
        return [salu(f"s_add_u32 m0, s{sW}, {base}"), salu(f"s_mov_b32 s{sOFF}, {U*8192+ex}"),
                I(f"buffer_load_dwordx4 v{DK if kind=='K' else DV}, s[{sr}:{sr+3}], s{sOFF} offen{POL[o['nt_dma']]} lds",'dma',[],[DK,DV],tag=(kind,U))]
    pre+=dma('K',0)+dma('K',1)
    if o['stamps']==2: pre+=stamp()
    a(salu("s_mul_i32 s6, s3, 253952"))
    for srs,p in ((sQ,40),(sO,46)):
        a(salu(f"s_add_u32 s{srs[0]}, s{p}, s6")); a(salu(f"s_addc_u32 s{srs[0]+1}, s{p+1}, 0")); a(salu(f"s_mov_b32 s{srs[0]+2}, 126976")); a(salu(f"s_mov_b32 s{srs[0]+3}, 0x20000"))
        a(salu(f"s_add_u32 s{srs[1]}, s{srs[0]}, 126976")); a(salu(f"s_addc_u32 s{srs[1]+1}, s{srs[0]+1}, 0")); a(salu(f"s_mov_b32 s{srs[1]+2}, 126976")); a(salu(f"s_mov_b32 s{srs[1]+3}, 0x20000"))
    def bperm(x,idx): return I(f"ds_bpermute_b32 v{x}, v{idx}, v{x}",'ds',[x],[x,idx])
    def qfix(X,s): return [bperm(X+4*s+k,240) for k in range(4)]
    def qload(p,s):
        d=(QA,QB)[p]+4*s; off=(s%2)*256+(s//2)*64 if M16 else s*32
        qo=(QO if o['qbp']>>p&1 else QD)[p]
        return I(f"buffer_load_dwordx4 {vr(d,4)}, v{qo}, s[{sQ[p]}:{sQ[p]+3}], 0 offen offset:{off}{nt}",'vld',R(d,4),[qo])
    pre+=only('A',[qload(0,s) for s in QORD]) if LAG and o['bq0']!=2 else [qload(0,s) for s in QORD]
    if o['stamps']==2: pre+=stamp()
    issued={('K',0),('K',1)}
    order=[(kd,u) for U in range(2,9) for kd,u in (('V',U-2),('K',U)) if u<8]
    for kd,u in order[:o['npre']]: pre+=dma(kd,u); issued.add((kd,u))
    if LAG and o['bq0']==1: pre+=only('B',[qload(0,s) for s in QORD])
    bl=[]
    for kd,u in order[o['npre']:o['npre']+o['nb0']]: bl+=dma(kd,u)+dma(kd,u,-4096); issued.add((kd,u))
    pre+=only('B',bl); bl=[]
    for kd,u in order[o['npre']+o['nb0']:o['npre']+o['nb0']+o['nb']]: bl+=dma(kd,u)+dma(kd,u,-4096); issued.add((kd,u))
    if o['stamps']==2:
        pre+=stamp(); a(I("s_nop 0",'other',wait={('K',0)})); pre+=stamp(); a(I("s_nop 0",'other',u=[QA])); pre+=stamp(); a(I("s_nop 0",'other',u=[QA+28])); pre+=stamp()
    a(V("v_lshrrev_b32",q4,"2",l16))
    if M16:
        for s in range(4):
            a(V("v_add_u32",t0,str(4*s),pg)); a(V("v_xor_b32",t0,t0,l16)); a(V("v_lshlrev_b32",t0,"4",t0)); a(V("v_lshl_add_u32",KAD+s,l16,"8",t0))
        a(V("v_lshrrev_b32",t1,"2",l))
        a(V("v_lshlrev_b32",t0,"8",t1)); a(V("v_and_b32",t2,"3",l)); a(V("v_lshl_add_u32",t0,t2,"3",t0)); a(V("v_add_u32",t0,str(VB),t0))
        a(V("v_and_b32",t1,"7",t1))
        for d in range(8): a(V("v_xor_b32",t2,str(d),t1)); a(V("v_lshl_add_u32",VAD+d,t2,"5",t0))
    else:
        for s in range(8):
            a(V("v_add_u32",t0,str(2*s),h)); a(V("v_xor_b32",t0,t0,l16)); a(V("v_lshlrev_b32",t0,"4",t0)); a(V("v_lshl_add_u32",KAD+s,l32,"8",t0))
        a(V("v_lshl_add_u32",t0,h,"2",q4)); a(V("v_lshlrev_b32",t0,"8",t0)); a(V("v_and_b32",t1,"16",l)); a(V("v_lshl_add_u32",t0,t1,"1",t0))
        a(V("v_and_b32",t1,"1",l)); a(V("v_lshl_add_u32",t0,t1,"4",t0)); a(V("v_and_b32",t1,"2",l)); a(V("v_lshl_add_u32",t0,t1,"2",t0))
        a(V("v_add_u32",t0,"0x10000",t0))
        for d in range(4): a(V("v_xor_b32",t2,str(d),q4)); a(V("v_lshl_add_u32",VAD+d,t2,"6",t0))
    c=(128**-0.5)*math.log2(math.e)
    a(salu(f"s_mov_b32 s{sC}, 0x{f2u(c):08x}"))
    chi=f2u(c)>>16; clo=f2u(c-struct.unpack('<f',struct.pack('<I',chi<<16))[0]); clo=(clo+0x8000)>>16
    def presc(p,s):
        r=[]
        for k in range(4):
            x=(QA,QB)[p]+4*s+k; t=T+2*(k%2)
            if o['presc']==1:
                r+=[I(f"v_dot2_f32_bf16 v{t}, v{x}, s{sC2}, 0 op_sel:[0,0,0] op_sel_hi:[0,1,0]",'dot',[t],[x]), I(f"v_dot2_f32_bf16 v{t+1}, v{x}, s{sC2}, 0 op_sel:[1,0,0] op_sel_hi:[1,1,0]",'dot',[t+1],[x])]
            elif p==0:
                r+=[V("v_lshlrev_b32",t,"16",x),V("v_and_b32",t+1,"0xffff0000",x),valu(f"v_pk_mul_f32 {vr(t,2)}, {vr(t,2)}, s[{sC}:{sC+1}] op_sel_hi:[1,0]",[t,t+1],[t,t+1])]
            else:
                r+=[V("v_lshlrev_b32",t,"16",x),V("v_and_b32",t+1,"0xffff0000",x),V("v_mul_f32",t,f"s{sC}",t),V("v_mul_f32",t+1,f"s{sC}",t+1)]
            if k>0: r.append(V("v_cvt_pk_bf16_f32",x-1,T+2*((k-1)%2),T+2*((k-1)%2)+1))
        r.append(V("v_cvt_pk_bf16_f32",(QA,QB)[p]+4*s+3,T+2,T+3))
        return r
    if o['msum']:
        for k in range(4): a(V("v_mov_b32",ONE+k,"0x3f803f80"))
    else:
        for p in range(2):
            for x in L[p]: a(V("v_mov_b32",x,"0")); a(V("v_mov_b32",x+1,"0"))

    if o['prio']:
        a(salu(f"s_cmp_ge_u32 s{sW}, 4096")); a(raw("s_cbranch_scc0 L_prio")); a(raw("s_setprio 1")); a(I("L_prio:",'label'))
    NU=32; NFR=o['nfr']; FRB=[FR+4*k for k in range(8)]+[144,148,152,156,168,172]; S0=S[0]; P0=P[0]
    def perm(n,x,y): return I(f"v_permlane{n}_swap_b32 v{x}, v{y}",'perm',[x,y],[x,y])
    def xred(op,regs,tmps):
        r=[]
        for n in (16,32): r+=[V("v_mov_b32",t,x) for x,t in zip(regs,tmps)]+[perm(n,x,t) for x,t in zip(regs,tmps)]+[V(op,x,x,t) for x,t in zip(regs,tmps)]
        return r
    def bias(U): return HB if (NR>8 and U%NR>=NR//2) else 0
    def rebias(regs,U):
        d=bias(U)-bias(U-1) if U>0 else 0
        return [V("v_add_u32" if d>0 else "v_subrev_u32",x,str(abs(d)),x) for x in regs] if d else []
    def kread(U,s): ad=KAD+s%4; fb=FRB[s]; return I(f"ds_read_b128 {vr(fb,4)}, v{ad} offset:{(U%NR)*8192-bias(U)+(s//4)*4096}",'ds',R(fb,4),[ad])
    def vfb(j): return FRB[(8+j)%NFR]
    def vread(U,j,u2): fb=vfb(j)+2*u2; return I(f"ds_read_b64_tr_b16 {vr(fb,2)}, v{VAD+j} offset:{(U%NR)*8192-bias(U)+u2*4096}",'ds',R(fb,2),[VAD+j])
    bs=[U for U in range(-1,NU-1) if U<o['early'] or (U-o['early'])%2==1]
    def bwait(U):
        nx=[x for x in bs if x>U]; U2=nx[0] if nx else NU
        return {('K',x) for x in range(U+2 if U>=0 else 0,min(U2+2,NU))}|{('V',x) for x in range(max(U,0),min(U2,NU))}
    def cbar(U,grp):
        if grp=='B': U+=LAG
        return only(grp,[I("s_barrier",'other',wait=bwait(U))]) if U in bs else []
    extra={U:[] for U in range(-1,NU+1)}
    mextra={U:[] for U in range(-1,NU+2)}
    vextra={U:[] for U in range(-1,NU+1)}
    preiss=set(issued); mainiss=[]
    for U in range(0,NU):
        b=max(x for x in bs if x<=U-1)
        todo=sorted([(X-1 if kd=='K' else X+0.5,kd,X) for X in range(NU) for kd in 'KV' if (kd,X) not in issued and X-NR<=max((b if kd=='K' else b-1)-LAG,-1)])
        for _,kd,X in todo[:(o['dma_e'] if U<o['dma_en'] else o['dma_s'])]: issued.add((kd,X)); mainiss.append((kd,X,U)); (mextra if o['dmam'] else extra)[U+o['dmam']].append(dma2(kd,X) if not (o['nodma'] and X>=8) else [I("s_nop 0",'dma',tag=(kd,X))])
    assert len(issued)==2*NU
    if LAG and o['shift']:
        Bhave=set(preiss)|{(kd,X+LAG) for kd,X,U in mainiss}
        for kd,X in sorted([(kd,X) for kd in 'KV' for X in range(NU) if (kd,X) not in Bhave],key=lambda z:z[1]-1 if z[0]=='K' else z[1]+0.5): assert X<NR; bl+=dma(kd,X)
        for kd,X,U in mainiss:
            b2=max(x for x in bs if x<=U+LAG); assert X+LAG-NR<=max((b2 if kd=='K' else b2-1)-LAG,-1),(kd,X,U)
    for j in range(4): extra[o['qn0']+(o['qn1']-o['qn0'])*j//4].append([qload(1,QORD[2*j]),qload(1,QORD[2*j+1])])
    for j,s in enumerate(QORD if o['qbp']&2 else []): extra[o['qf0']+(16-o['qf0'])*j//8].append(qfix(QB,s))
    if o['presc']:
        for j,s in enumerate(QORD): vextra[o['ps0']+(16-o['ps0'])*j//8]+=presc(1,s)
    nts=POL[o['nt_st']]
    def fin(p):
        l0,l1=LA if o['msum'] else L[p]
        thr=V("v_mov_b32",T+4,f"0x{f2u(2.0**(-1 if o['force_slow'] else 30)):08x}")
        r=[] if o['msum'] else xred("v_add_f32",[l0,l1],[T+2,T+3])
        return r+[trans(f"v_rcp_f32 v{RI[0]}, v{l0}",[RI[0]],[l0]),trans(f"v_rcp_f32 v{RI[1]}, v{l1}",[RI[1]],[l1]),thr,V("v_add_f32",T+5,l0,l1),
                  valu(f"v_cmp_nlt_f32 s[{sFLAG+2*p}:{sFLAG+2*p+1}], v{T+5}, v{T+4}",[],[T+5,T+4])]
    def conv(p,d,pk):
        X=(QA,QB)[p]; cv=[]; pend=None
        for k in range(8):
            r=O+16*d+2*k; qb=(k//2)%2; ri=RI[qb]; x=X+8*d+4*qb+2*(k//4)+k%2
            if pk: cv.append(valu(f"v_pk_mul_f32 {vr(r,2)}, {vr(r,2)}, {vr(ri,2)} op_sel_hi:[1,0]",[r,r+1],[r,r+1,ri]))
            else: cv+=[V("v_mul_f32",r,r,ri),V("v_mul_f32",r+1,r+1,ri)]
            if pend: cv.append(pend)
            pend=V("v_cvt_pk_bf16_f32",x,r,r+1)
        return cv+[pend]
    def store(p,d,g):
        x=(QA,QB)[p]+8*d+4*g
        if o['hackst']: return [V("v_and_b32",T,"0xffffe000",QO[p]),valu(f"v_mbcnt_lo_u32_b32 v{T+1}, -1, 0",[T+1],[]),valu(f"v_mbcnt_hi_u32_b32 v{T+1}, -1, v{T+1}",[T+1],[T+1]),V("v_lshl_add_u32",T,T+1,"4",T),V("v_add_u32",T,str((2*d+g)*1024),T),
            I(f"buffer_store_dwordx4 {vr(x,4)}, v{T}, s[{sO[p]}:{sO[p]+3}], 0 offen{nts}",'vst',[],R(x,4)+[T],tag=('O',p))]
        return [perm(16,x,x+2),perm(16,x+1,x+3)]+[bperm(x+k,241) for k in range(4 if o['sbp']>>p&1 else 0)]+[I(f"buffer_store_dwordx4 {vr(x,4)}, v{(QO if o['sbp']>>p&1 else QD)[p]}, s[{sO[p]}:{sO[p]+3}], 0 offen offset:{d*64+256*g}{nts}",'vst',[],R(x,4)+[QO[p],QD[p]],tag=('O',p))]
    def store2(p,e,qb,X=None,pol=None):
        X=(QA,QB)[p] if X is None else X; A=X+16*e+4*qb; B=A+8; pol=nts if pol is None else pol
        r=[perm(16,A,A+2),perm(16,A+1,A+3),perm(16,B,B+2),perm(16,B+1,B+3)]+[V("v_mov_b32",T+k,B+k) for k in range(4)]
        r+=[I(f"v_mov_b32_dpp v{B+k}, v{A+k} row_shl:4 row_mask:0xf bank_mask:0x5",'perm',[B+k],[A+k,B+k]) for k in range(4)]
        r+=[I(f"v_mov_b32_dpp v{A+k}, v{T+k} row_shr:4 row_mask:0xf bank_mask:0xa",'perm',[A+k],[T+k,A+k]) for k in range(4)]
        st=[I(f"buffer_store_dwordx4 {vr(x,4)}, v{SO[p]}, s[{sO[p]}:{sO[p]+3}], 0 offen offset:{128*e+256*qb+2048*i}{pol}",'vst',[],R(x,4)+[SO[p]],tag=('O',p)) for i,x in ((1,B),(0,A))]
        return r,st
    for j in range(4 if o['dppst'] else 0):
        r,st=store2(0,j//2,j%2); w=o['st1']-o['st0']
        vextra[o['st0']+w*(2*j)//8]+=r+st[:1]; vextra[o['st0']+w*(2*j+1)//8]+=st[1:]
    for j in range(0 if o['dppst'] else 8):
        if o['stpair']: vextra[o['st0']+(o['st1']-o['st0'])*(j//2)//4]+=store(0,(j//4)*2+j%2,(j//2)%2)
        else:
            z=store(0,(j//4)*2+j%2,(j//2)%2); u=o['st0']+(o['st1']-o['st0'])*j//8; vextra[u]+=z[:-1]; extra[u+1].append(z[-1:])
    body=[I("s_barrier",'other',wait=bwait(-1))]+[kread(0,s) for s in range(8)]
    if LAG:
        qb_=[] if o['bq0'] else [qload(0,s) for s in QORD]
        for U in range(-LAG,0):
            if o['qsplit']:
                if U+LAG==0: body+=only('B',qb_[:o['qsplit']])
                if U+LAG==1: body+=only('B',qb_[o['qsplit']:]+bl if o['bqfirst'] else bl+qb_[o['qsplit']:])
            elif U+LAG==o['bqpos']: body+=only('B',qb_+bl if o['bqfirst'] else bl+qb_)
            if U<-1: body+=cbar(U,'B')
        if not (o['qbp']&1 or o['presc']): body+=cbar(-1,'B')
        if o['bq0']!=2 or bl: body+=only('A',[I("s_nop 0",'other',u=R(QA,32))])+only('B',[I("s_nop 0",'other',u=R(QA,32))])
    if o['presc']:
        assert not o['msum'] and not o['qbp']
        for s in QORD: body+=presc(0,s)
        if LAG: body+=cbar(-1,'B')
    if o['qbp']&1:
        for s in QORD: body+=qfix(QA,s)
        if LAG: body+=cbar(-1,'B')
    for U in range(NU+1):
        if o['stamps']==4:
            if U in (22,23,24): body+=stamp()
        elif o['stamps'] and U in ([0,1,5,9,13,17,21,25,29,32] if o['stamps']==1 else [0,1,5] if o['stamps']==2 else [0,1,9,17,25,32]): body+=stamp()
        body.append(I(f"s_setprio {o['pm1']}",'other',wait={'LGALL'} if o['lg0'] else None))
        ms=[]; rd=[vread(U-1,j,u2) for j in range(8) for u2 in range(2)] if U>=1 else []
        npre_v=0
        if U<NU:
            q=(QA,QB)[U//16]
            for s in range(8):
                kt,ds=s//4,s%4
                for qb in range(2): dd=S0+8*qb+4*kt; ms.append(mfma16(dd,FRB[s],q+4*(2*ds+qb),(CI[qb] if o['presc'] and U%16>=1 else None) if ds==0 else dd))
        else: rd=[]
        mx=[]
        if U==17 and o['cvspill']: mx=conv(0,3,0)
        for i,m in enumerate(ms):
            body.append(m)
            if i==o['pswitch']: body.append(raw(f"s_setprio {o['pm2']}"))
            if rd: body.append(rd[i])
            if mx: body+=mx[i*len(mx)//16:(i+1)*len(mx)//16]
        if U>=1:
            first=(U-1)%16==0
            if o['msum']: body+=[mfma16(LA[qb],ONE,P0+4*qb,None if first else LA[qb]) for qb in range(2)]
            if o['pvord']:
                for qb in range(2):
                    for j in range(8): dd=O+8*j+4*qb; body.append(mfma16(dd,vfb(j),P0+4*qb,None if first else dd))
            for j in range(0 if o['pvord'] else 8):
                for qb in range(2): dd=O+8*j+4*qb; body.append(mfma16(dd,vfb(j),P0+4*qb,None if first else dd))
                if j%2==1 and j//2<len(mextra[U]): body+=mextra[U][j//2]
        body.append(raw(f"s_setprio {o['pv']}"))
        if o['stamps']==4 and U in (22,23): body+=stamp()
        body+=cbar(U,'B')
        if o['stamps']==4 and U in (22,23): body+=stamp()
        if U==NU: break
        s=S0; p=U//16; lst=(rebias(R(KAD,4),U+1) if U+1<NU else [])+rebias(R(VAD,8),U)
        if U%16==0:
            for k in (0,3,5): lst+=[V("v_max3_f32",T+i,*( [s+8*i,s+8*i+1,s+8*i+2] if k==0 else [T+i,s+8*i+k,s+8*i+k+1])) for i in range(2)]
            lst+=[V("v_max_f32",T+i,T+i,s+8*i+7) for i in range(2)]+xred("v_max_f32",[T,T+1],[T+2,T+3])
            lst+=[V("v_sub_f32",CI[i]+k,"0",T+i) for k in range(4) for i in range(2)] if o['presc'] else [V("v_mul_f32",MC[i],f"s{sC}",T+i) for i in range(2)]
        def fm(k):
            if o['presc']: return [V("v_add_f32",r,r,CI[k//4]) for r in (s+2*k,s+2*k+1)] if U%16==0 else []
            return [valu(f"v_fma_f32 v{r}, v{r}, s{sC}, -v{MC[k//4]}",[r],[r,MC[k//4]]) for r in (s+2*k,s+2*k+1)]
        def ex(r): return [trans(f"v_exp_f32 v{r}, v{r}",[r],[r])]
        def ad(k): la=L[p][k//4]; return [] if o['msum'] else [V("v_add_f32",la,la,s+2*k),V("v_add_f32",la+1,la+1,s+2*k+1)]
        def cvt(k): return [V("v_cvt_pk_bf16_f32",P0+k,s+2*k,s+2*k+1)]
        units=[fm(0)]
        for k in range(8):
            units+=[ex(s+2*k), fm(k+1) if k<7 else [], ex(s+2*k+1)]
            if k>0: units.append(ad(k-1))
            if k%2==0 and k>0: units.append(cvt(k-2)+cvt(k-1))
        units+=[ad(7),cvt(6)+cvt(7)]
        units=[u for u in units if u]
        side=([[kread(U+1,k)] for k in range(8)] if U+1<NU else [[vread(U,j,u2)] for j in range(8) for u2 in range(2)])
        ex_=extra[U]; sidem=[]
        for k in range(max(len(side),len(ex_))):
            if k<len(ex_): sidem.append(ex_[k])
            if k<len(side): sidem.append(side[k])
        nu=len(units)-o['sidetail']
        for k,u in enumerate(units):
            lst+=u
            if k<nu:
                for z in sidem[k*len(sidem)//nu:(k+1)*len(sidem)//nu]: lst+=z
        if U%16==15 and not o['msum']: lst+=[V("v_add_f32",x,x,x+1) for x in L[p]]+fin(p)
        if U==16:
            pr=fin(0) if o['msum'] else []
            for d in range(3 if o['cvspill'] else 4): pr+=conv(0,d,o['pkcv'])
            lst=lst+pr
        body+=lst+vextra[U]
        if o['stamps']==4 and U in (22,23): body+=stamp()
        body+=cbar(U,'A')
    if o['msum']: body+=fin(1)
    if o['dppst']:
        for e in range(2):
            body+=conv(1,2*e,1)+conv(1,2*e+1,1)
            for qb in range(2): r,st=store2(1,e,qb); body+=r+st
    elif o['stpair']:
        for d in (0,2): body+=conv(1,d,1)+conv(1,d+1,1)+store(1,d,0)+store(1,d+1,0)+store(1,d,1)+store(1,d+1,1)
    else:
        pend=[]
        for d in range(4):
            z0,z1=store(1,d,0),store(1,d,1); body+=conv(1,d,1)+pend+z0[:-1]+z1[:-1]; pend=z0[-1:]+z1[-1:]
        body+=pend
    post=[]
    if o['stamps']==3:
        post+=stamp(); post.append(I("s_nop 0",'other',wait={'VMALL'})); post+=stamp()
        post+=[raw("s_waitcnt lgkmcnt(0)"), salu(f"s_add_u32 s3, s2, s{sW}"), salu("s_cmp_lg_u32 s3, 133"), raw("s_cbranch_scc1 L_end"),
               salu("s_mov_b32 s8, s4"),salu("s_mov_b32 s9, s5"),salu("s_mov_b32 s10, 256"),salu("s_mov_b32 s11, 0x20000"), V("v_mov_b32",T,"0"), raw("s_mov_b64 exec, 1")]
        for j in range(1,len(stl)):
            post+=[salu(f"s_sub_u32 s3, s{50+4*j}, s50"),salu(f"s_sub_u32 s6, s{52+4*j}, s52"),V("v_mov_b32",T+2,"s3"),V("v_mov_b32",T+3,"s6"),
                   I(f"buffer_store_dwordx2 {vr(T+2,2)}, v{T}, s[8:11], 0 offen offset:{8*(j-1)}",'vst',[],[T,T+2,T+3])]
    elif o['stamps']:
        post+=stamp(); post.append(I("s_nop 0",'other',wait={'VMALL'})); post+=stamp()
        post+= [raw("s_waitcnt lgkmcnt(0)"), salu("s_mov_b32 s8, s4"),salu("s_mov_b32 s9, s5"),salu("s_mov_b32 s10, 0x100000"),salu("s_mov_b32 s11, 0x20000"),
                salu("s_lshl_b32 s3, s2, 11"), salu(f"s_lshr_b32 s6, s{sW}, 2"), salu("s_add_u32 s3, s3, s6"), V("v_mov_b32",T,"s3"), raw("s_mov_b64 exec, 1")]
        for j in range(2*len(stl)):
            post+=[V("v_mov_b32",T+2,f"s{50+2*j}"),V("v_mov_b32",T+3,f"s{51+2*j}"), I(f"buffer_store_dwordx2 {vr(T+2,2)}, v{T}, s[8:11], 0 offen offset:{8*j}",'vst',[],[T,T+2,T+3])]
        post.append(raw("s_mov_b64 exec, -1"))
    slow=[]
    if o['slow'] and not o['stamps']:
        from slowpath import slowpath
        slow=slowpath(locals())
    ins=insert_waits(pre+body+post+slow)
    ins,nn=fix_hazards(ins,verbose=o['verbose'])
    txt=[x.t if x.k=='label' else "    "+x.t for x in ins if x.t]
    hdr=open('cdna_kernels/%s.s.ref'%NAME).read().split('; Override')[0]
    out=hdr+f"; @launch grid=(256,1,1) block=(512,1,1) lds={2*VB}\n.amdgcn_target \"amdgcn-amd-amdhsa--gfx950\"\n.text\n.globl {NAME}_kernel\n.p2align 8\n.type {NAME}_kernel,@function\n{NAME}_kernel:\n"
    out+="\n".join(txt)+"\nL_end:\n    s_endpgm\n"
    out+=f""".section .rodata,"a"
.p2align 6
.amdhsa_kernel {NAME}_kernel
  .amdhsa_next_free_vgpr 256
  .amdhsa_next_free_sgpr 102
  .amdhsa_accum_offset 256
  .amdhsa_group_segment_fixed_size 0
  .amdhsa_kernarg_size 48
  .amdhsa_user_sgpr_count 2
  .amdhsa_user_sgpr_kernarg_segment_ptr 1
  .amdhsa_system_sgpr_workgroup_id_x 1
.end_amdhsa_kernel
"""
    return out,len(ins),nn
if __name__=="__main__":
    path=sys.argv[1]; kw={}
    for s in sys.argv[2:]:
        k,v=s.split('='); kw[k]=float(v) if '.' in v else int(v)
    out,n,nn=gen(**kw); open(path,'w').write(out); print(path,"insts",n,"nops",nn)
```

```python
import sys, math, struct
from asmlib import *
NAME="standalone__mha_softmax__near_ridge"
def f2u(x): return struct.unpack('<I',struct.pack('<f',x))[0]
DEF=dict(per=2, fint=1, nb0=0, qsplit=0, qbp=0, sbp=2, nr=10, dppst=0, qf0=12, shift=1, pv=3, pvord=0, hackst=0, bq0=1, nb=0, bqfirst=1, bqpos=0, lag=2, bq=0, lg0=1, dmam=0, nodma=0, nfr=14, dma_e=3, dma_en=4, dma_s=2, pm1=0, pm2=1, pswitch=8, sidetail=3, cvspill=0, pkcv=0, presc=0, msum=1, ps0=12, nt_dma=1, stpair=0, npre=4, maxdma=4, stamps=0, PD=6, BOFF=4, early=6, prio=0, qn0=7, qn1=15, st0=18, st1=30, nt_st=3, nt_ld=1, share=1, slow=1, force_slow=0, pkadd=0, dmaspread=1.0, m16=1, verbose=0, nosm=0, nold=0)
POL=['',' nt',' sc1',' sc0 sc1',' nt sc1',' sc0 nt sc1',' sc0 nt']
QORD=[0,2,1,3,4,6,5,7]
def gen(**kw):
    o=dict(DEF); o.update(kw); M16=o['m16']; G=2 if M16 else 1
    O=0; QA=64; QB=96; S=[128,144]; P=[160,168]; FR=176; NFR=8
    NKA=4 if M16 else 8; KAD=208; VAD=KAD+NKA; DK=220; DV=221; QO=[222,223]; MC=[224,225]; L=[[226,228],[252,254]]; LA=[226,252]; RI=[230,232]; T=234; CI=[244,248]; ONE=248; sC2=35
    sQ=[8,12]; sK=16; sV=20; sO=[24,28]; sC=32; sW=33; sOFF=34; sFLAG=36
    pre=[]; a=pre.append
    def V(op,d,*src):
        regs=[x for x in src if isinstance(x,int)]
        return valu(f"{op} v{d}, "+", ".join(f"v{x}" if isinstance(x,int) else x for x in src),[d],regs)
    a(raw("s_cmp_ge_u32 s2, 256")); a(raw("s_cbranch_scc1 L_end"))
    a(raw("s_load_dwordx4 s[40:43], s[0:1], 0")); a(raw("s_load_dwordx4 s[44:47], s[0:1], 16")); a(raw(f"s_load_dwordx2 s[4:5], s[0:1], {32 if o['stamps']==3 else 40}"))
    stl=[]
    def stamp():
        n=len(stl); stl.append(n); r=50+4*n; assert r+4<=102
        return [raw(f"s_memtime s[{r}:{r+1}]"),raw(f"s_memrealtime s[{r+2}:{r+3}]")]
    if o['stamps']: pre+=stamp()
    l=128; wv=129; h=130; l16=131; l32=132; t0=133; t1=134; q4=135; t2=136; g4=137; pg=138
    a(V("v_and_b32",l,"63",0)); a(V("v_lshrrev_b32",wv,"6",0)); a(raw("s_nop 0"))
    a(I(f"v_readfirstlane_b32 s{sW}, v{wv}",'rfl',[],[wv]))
    if o['share']:
        a(salu("s_and_b32 s3, s2, 7")); a(salu("s_lshr_b32 s6, s2, 4")); a(salu("s_lshl_b32 s3, s3, 4")); a(salu("s_add_u32 s3, s3, s6"))
        a(salu("s_lshr_b32 s7, s2, 3")); a(salu("s_and_b32 s7, s7, 1"))
    else:
        a(salu("s_lshr_b32 s3, s2, 1")); a(salu("s_and_b32 s7, s2, 1"))
    a(V("v_lshrrev_b32",h,"5",l)); a(V("v_and_b32",l16,"15",l)); a(V("v_and_b32",l32,"31",l)); a(V("v_lshrrev_b32",g4,"4",l))
    a(V("v_lshrrev_b32",t0,"4",0)); a(V("v_and_b32",t1,"15",t0)); a(V("v_xor_b32",t1,t1,l16)); a(V("v_lshlrev_b32",t1,"4",t1)); a(V("v_lshl_add_u32",DK,t0,"8",t1))
    if M16: a(V("v_and_b32",t1,"7",t0)); a(V("v_lshlrev_b32",t1,"1",t1))
    else: a(V("v_and_b32",t1,"3",t0)); a(V("v_lshlrev_b32",t1,"2",t1))
    a(V("v_xor_b32",t1,t1,l16)); a(V("v_lshlrev_b32",t1,"4",t1)); a(V("v_lshl_add_u32",DV,t0,"8",t1))
    if M16:
        a(V("v_and_b32",pg,"1",g4)); a(V("v_lshl_add_u32",pg,pg,"1",h))
        a(V("v_lshrrev_b32",t0,"2",0)); a(V("v_lshlrev_b32",t0,"9",t0)); a(V("v_and_b32",t1,"3",l)); a(V("v_lshl_add_u32",t0,t1,"4",t0))
        a(V("v_lshl_add_u32",240,l16,"2",pg)); a(V("v_lshlrev_b32",240,"2",240))
        a(V("v_and_b32",t2,"1",l)); a(V("v_lshlrev_b32",t2,"7",t2)); a(V("v_and_b32",t1,"2",l)); a(V("v_lshl_add_u32",t2,t1,"5",t2)); a(V("v_and_b32",t1,"60",l)); a(V("v_add_u32",241,t2,t1))
    else:
        a(V("v_lshlrev_b32",t0,"5",wv)); a(V("v_add_u32",t0,t0,l32)); a(V("v_lshlrev_b32",t0,"8",t0)); a(V("v_lshl_add_u32",t0,h,"4",t0))
    a(salu("s_lshl_b32 s6, s7, 16")); a(V("v_add_u32",QO[0],"s6",t0)); a(salu("s_xor_b32 s6, s6, 0x10000")); a(V("v_add_u32",QO[1],"s6",t0))
    a(V("v_lshlrev_b32",t0,"4",wv)); a(V("v_add_u32",t0,t0,l16)); a(V("v_lshlrev_b32",t0,"9",t0)); a(V("v_lshl_add_u32",t0,pg,"4",t0))
    a(V("v_add_u32",243,"s6",t0)); a(V("v_xor_b32",242,"0x10000",243)); QD=[242,243]
    a(raw("s_waitcnt lgkmcnt(0)"))
    if o['stamps']==2: pre+=stamp()
    a(salu("s_mul_i32 s6, s3, 0x40000"))
    for sr,p in ((sK,42),(sV,44)):
        a(salu(f"s_add_u32 s{sr}, s{p}, s6")); a(salu(f"s_addc_u32 s{sr+1}, s{p+1}, 0")); a(salu(f"s_mov_b32 s{sr+2}, 0x40000")); a(salu(f"s_mov_b32 s{sr+3}, 0x20000"))
    a(salu(f"s_lshl_b32 s{sW}, s{sW}, 10"))
    a(salu(f"s_cmp_ge_u32 s{sW}, 4096")); a(raw("s_cselect_b64 vcc, -1, 0"))
    nlab=[0]
    def only(grp,lst):
        if not lst: return []
        nlab[0]+=1; lb=f"L_g{nlab[0]}"
        for x in lst: x.g=grp
        return [raw(f"s_cbranch_vcc{'nz' if grp=='A' else 'z'} {lb}")]+lst+[I(lb+":",'label')]
    LAG=o['lag']; NR=o['nr']; VB=NR*8192; HB=(NR//2)*8192; SO=[240,241]
    nt=POL[o['nt_ld']]
    a(salu(f"s_cselect_b32 s48, {LAG*8192}, 0")); a(salu(f"s_cselect_b32 s49, {VB}, 0")); a(salu(f"s_add_u32 s35, s{sW}, s48")); a(salu("s_sub_u32 s49, s35, s49"))
    def dma2(kind,U):
        if not LAG: return dma(kind,U)
        if not o['shift']: return only('A',dma(kind,U)+dma(kind,U,4096))
        if U+LAG>=32: return only('A',dma(kind,U))
        r=dma(kind,U); r[2].tagB=(kind,U+LAG)
        return [salu(f"s_add_u32 m0, s{35 if U%NR+LAG<NR else 49}, {(0 if kind=='K' else VB)+(U%NR)*8192}"), salu(f"s_add_u32 s{sOFF}, s48, {U*8192}"), r[2]]
    def dma(kind,U,ex=0):
        base=(0 if kind=='K' else VB)+(U%NR)*8192+ex; sr=sK if kind=='K' else sV
        return [salu(f"s_add_u32 m0, s{sW}, {base}"), salu(f"s_mov_b32 s{sOFF}, {U*8192+ex}"),
                I(f"buffer_load_dwordx4 v{DK if kind=='K' else DV}, s[{sr}:{sr+3}], s{sOFF} offen{POL[o['nt_dma']]} lds",'dma',[],[DK,DV],tag=(kind,U))]
    pre+=dma('K',0)+dma('K',1)
    if o['stamps']==2: pre+=stamp()
    a(salu("s_mul_i32 s6, s3, 253952"))
    for srs,p in ((sQ,40),(sO,46)):
        a(salu(f"s_add_u32 s{srs[0]}, s{p}, s6")); a(salu(f"s_addc_u32 s{srs[0]+1}, s{p+1}, 0")); a(salu(f"s_mov_b32 s{srs[0]+2}, 126976")); a(salu(f"s_mov_b32 s{srs[0]+3}, 0x20000"))
        a(salu(f"s_add_u32 s{srs[1]}, s{srs[0]}, 126976")); a(salu(f"s_addc_u32 s{srs[1]+1}, s{srs[0]+1}, 0")); a(salu(f"s_mov_b32 s{srs[1]+2}, 126976")); a(salu(f"s_mov_b32 s{srs[1]+3}, 0x20000"))
    def bperm(x,idx): return I(f"ds_bpermute_b32 v{x}, v{idx}, v{x}",'ds',[x],[x,idx])
    def qfix(X,s): return [bperm(X+4*s+k,240) for k in range(4)]
    def qload(p,s):
        d=(QA,QB)[p]+4*s; off=(s%2)*256+(s//2)*64 if M16 else s*32
        qo=(QO if o['qbp']>>p&1 else QD)[p]
        return I(f"buffer_load_dwordx4 {vr(d,4)}, v{qo}, s[{sQ[p]}:{sQ[p]+3}], 0 offen offset:{off}{nt}",'vld',R(d,4),[qo])
    pre+=only('A',[qload(0,s) for s in QORD]) if LAG and o['bq0']!=2 else [qload(0,s) for s in QORD]
    if o['stamps']==2: pre+=stamp()
    issued={('K',0),('K',1)}
    order=[(kd,u) for U in range(2,9) for kd,u in (('V',U-2),('K',U)) if u<8]
    for kd,u in order[:o['npre']]: pre+=dma(kd,u); issued.add((kd,u))
    if LAG and o['bq0']==1: pre+=only('B',[qload(0,s) for s in QORD])
    bl=[]
    for kd,u in order[o['npre']:o['npre']+o['nb0']]: bl+=dma(kd,u)+dma(kd,u,-4096); issued.add((kd,u))
    pre+=only('B',bl); bl=[]
    for kd,u in order[o['npre']+o['nb0']:o['npre']+o['nb0']+o['nb']]: bl+=dma(kd,u)+dma(kd,u,-4096); issued.add((kd,u))
    if o['stamps']==2:
        pre+=stamp(); a(I("s_nop 0",'other',wait={('K',0)})); pre+=stamp(); a(I("s_nop 0",'other',u=[QA])); pre+=stamp(); a(I("s_nop 0",'other',u=[QA+28])); pre+=stamp()
    a(V("v_lshrrev_b32",q4,"2",l16))
    if M16:
        for s in range(4):
            a(V("v_add_u32",t0,str(4*s),pg)); a(V("v_xor_b32",t0,t0,l16)); a(V("v_lshlrev_b32",t0,"4",t0)); a(V("v_lshl_add_u32",KAD+s,l16,"8",t0))
        a(V("v_lshrrev_b32",t1,"2",l))
        a(V("v_lshlrev_b32",t0,"8",t1)); a(V("v_and_b32",t2,"3",l)); a(V("v_lshl_add_u32",t0,t2,"3",t0)); a(V("v_add_u32",t0,str(VB),t0))
        a(V("v_and_b32",t1,"7",t1))
        for d in range(8): a(V("v_xor_b32",t2,str(d),t1)); a(V("v_lshl_add_u32",VAD+d,t2,"5",t0))
    else:
        for s in range(8):
            a(V("v_add_u32",t0,str(2*s),h)); a(V("v_xor_b32",t0,t0,l16)); a(V("v_lshlrev_b32",t0,"4",t0)); a(V("v_lshl_add_u32",KAD+s,l32,"8",t0))
        a(V("v_lshl_add_u32",t0,h,"2",q4)); a(V("v_lshlrev_b32",t0,"8",t0)); a(V("v_and_b32",t1,"16",l)); a(V("v_lshl_add_u32",t0,t1,"1",t0))
        a(V("v_and_b32",t1,"1",l)); a(V("v_lshl_add_u32",t0,t1,"4",t0)); a(V("v_and_b32",t1,"2",l)); a(V("v_lshl_add_u32",t0,t1,"2",t0))
        a(V("v_add_u32",t0,"0x10000",t0))
        for d in range(4): a(V("v_xor_b32",t2,str(d),q4)); a(V("v_lshl_add_u32",VAD+d,t2,"6",t0))
    c=(128**-0.5)*math.log2(math.e)
    a(salu(f"s_mov_b32 s{sC}, 0x{f2u(c):08x}"))
    chi=f2u(c)>>16; clo=f2u(c-struct.unpack('<f',struct.pack('<I',chi<<16))[0]); clo=(clo+0x8000)>>16
    def presc(p,s):
        r=[]
        for k in range(4):
            x=(QA,QB)[p]+4*s+k; t=T+2*(k%2)
            if o['presc']==1:
                r+=[I(f"v_dot2_f32_bf16 v{t}, v{x}, s{sC2}, 0 op_sel:[0,0,0] op_sel_hi:[0,1,0]",'dot',[t],[x]), I(f"v_dot2_f32_bf16 v{t+1}, v{x}, s{sC2}, 0 op_sel:[1,0,0] op_sel_hi:[1,1,0]",'dot',[t+1],[x])]
            elif p==0:
                r+=[V("v_lshlrev_b32",t,"16",x),V("v_and_b32",t+1,"0xffff0000",x),valu(f"v_pk_mul_f32 {vr(t,2)}, {vr(t,2)}, s[{sC}:{sC+1}] op_sel_hi:[1,0]",[t,t+1],[t,t+1])]
            else:
                r+=[V("v_lshlrev_b32",t,"16",x),V("v_and_b32",t+1,"0xffff0000",x),V("v_mul_f32",t,f"s{sC}",t),V("v_mul_f32",t+1,f"s{sC}",t+1)]
            if k>0: r.append(V("v_cvt_pk_bf16_f32",x-1,T+2*((k-1)%2),T+2*((k-1)%2)+1))
        r.append(V("v_cvt_pk_bf16_f32",(QA,QB)[p]+4*s+3,T+2,T+3))
        return r
    if o['msum']:
        for k in range(4): a(V("v_mov_b32",ONE+k,"0x3f803f80"))
    else:
        for p in range(2):
            for x in L[p]: a(V("v_mov_b32",x,"0")); a(V("v_mov_b32",x+1,"0"))

    if o['prio']:
        a(salu(f"s_cmp_ge_u32 s{sW}, 4096")); a(raw("s_cbranch_scc0 L_prio")); a(raw("s_setprio 1")); a(I("L_prio:",'label'))
    NU=32; NFR=o['nfr']; FRB=[FR+4*k for k in range(8)]+[144,148,152,156,168,172]; S0=S[0]; P0=P[0]
    def perm(n,x,y): return I(f"v_permlane{n}_swap_b32 v{x}, v{y}",'perm',[x,y],[x,y])
    def xred(op,regs,tmps):
        r=[]
        for n in (16,32): r+=[V("v_mov_b32",t,x) for x,t in zip(regs,tmps)]+[perm(n,x,t) for x,t in zip(regs,tmps)]+[V(op,x,x,t) for x,t in zip(regs,tmps)]
        return r
    def bias(U): return HB if (NR>8 and U%NR>=NR//2) else 0
    def rebias(regs,U):
        d=bias(U)-bias(U-1) if U>0 else 0
        return [V("v_add_u32" if d>0 else "v_subrev_u32",x,str(abs(d)),x) for x in regs] if d else []
    def kread(U,s): ad=KAD+s%4; fb=FRB[s]; return I(f"ds_read_b128 {vr(fb,4)}, v{ad} offset:{(U%NR)*8192-bias(U)+(s//4)*4096}",'ds',R(fb,4),[ad])
    def vfb(j): return FRB[(8+j)%NFR]
    def vread(U,j,u2): fb=vfb(j)+2*u2; return I(f"ds_read_b64_tr_b16 {vr(fb,2)}, v{VAD+j} offset:{(U%NR)*8192-bias(U)+u2*4096}",'ds',R(fb,2),[VAD+j])
    bs=[U for U in range(-1,NU-1) if U<o['early'] or (U-o['early'])%o['per']==o['per']-1]
    def bwait(U):
        nx=[x for x in bs if x>U]; U2=nx[0] if nx else NU
        return {('K',x) for x in range(U+2 if U>=0 else 0,min(U2+2,NU))}|{('V',x) for x in range(max(U,0),min(U2,NU))}
    def cbar(U,grp):
        if grp=='B': U+=LAG
        return only(grp,[I("s_barrier",'other',wait=bwait(U))]) if U in bs else []
    extra={U:[] for U in range(-1,NU+1)}
    mextra={U:[] for U in range(-1,NU+2)}
    vextra={U:[] for U in range(-1,NU+1)}
    preiss=set(issued); mainiss=[]
    for U in range(0,NU):
        b=max(x for x in bs if x<=U-1)
        todo=sorted([(X-1 if kd=='K' else X+0.5,kd,X) for X in range(NU) for kd in 'KV' if (kd,X) not in issued and X-NR<=max((b if kd=='K' else b-1)-LAG,-1)])
        for _,kd,X in todo[:(o['dma_e'] if U<o['dma_en'] else o['dma_s'])]: issued.add((kd,X)); mainiss.append((kd,X,U)); (mextra if o['dmam'] else extra)[U+o['dmam']].append(dma2(kd,X) if not (o['nodma'] and X>=8) else [I("s_nop 0",'dma',tag=(kd,X))])
    assert len(issued)==2*NU
    if LAG and o['shift']:
        Bhave=set(preiss)|{(kd,X+LAG) for kd,X,U in mainiss}
        for kd,X in sorted([(kd,X) for kd in 'KV' for X in range(NU) if (kd,X) not in Bhave],key=lambda z:z[1]-1 if z[0]=='K' else z[1]+0.5): assert X<NR; bl+=dma(kd,X)
        for kd,X,U in mainiss:
            b2=max(x for x in bs if x<=U+LAG); assert X+LAG-NR<=max((b2 if kd=='K' else b2-1)-LAG,-1),(kd,X,U)
    for j in range(4): extra[o['qn0']+(o['qn1']-o['qn0'])*j//4].append([qload(1,QORD[2*j]),qload(1,QORD[2*j+1])])
    for j,s in enumerate(QORD if o['qbp']&2 else []): extra[o['qf0']+(16-o['qf0'])*j//8].append(qfix(QB,s))
    if o['presc']:
        for j,s in enumerate(QORD): vextra[o['ps0']+(16-o['ps0'])*j//8]+=presc(1,s)
    nts=POL[o['nt_st']]
    def fin(p):
        l0,l1=LA if o['msum'] else L[p]
        thr=V("v_mov_b32",T+4,f"0x{f2u(2.0**(-1 if o['force_slow'] else 30)):08x}")
        r=[] if o['msum'] else xred("v_add_f32",[l0,l1],[T+2,T+3])
        return r+[trans(f"v_rcp_f32 v{RI[0]}, v{l0}",[RI[0]],[l0]),trans(f"v_rcp_f32 v{RI[1]}, v{l1}",[RI[1]],[l1]),thr,V("v_add_f32",T+5,l0,l1),
                  valu(f"v_cmp_nlt_f32 s[{sFLAG+2*p}:{sFLAG+2*p+1}], v{T+5}, v{T+4}",[],[T+5,T+4])]
    def conv(p,d,pk):
        X=(QA,QB)[p]; cv=[]; pend=None
        for k in range(8):
            r=O+16*d+2*k; qb=(k//2)%2; ri=RI[qb]; x=X+8*d+4*qb+2*(k//4)+k%2
            if pk: cv.append(valu(f"v_pk_mul_f32 {vr(r,2)}, {vr(r,2)}, {vr(ri,2)} op_sel_hi:[1,0]",[r,r+1],[r,r+1,ri]))
            else: cv+=[V("v_mul_f32",r,r,ri),V("v_mul_f32",r+1,r+1,ri)]
            if pend: cv.append(pend)
            pend=V("v_cvt_pk_bf16_f32",x,r,r+1)
        return cv+[pend]
    def store(p,d,g):
        x=(QA,QB)[p]+8*d+4*g
        if o['hackst']: return [V("v_and_b32",T,"0xffffe000",QO[p]),valu(f"v_mbcnt_lo_u32_b32 v{T+1}, -1, 0",[T+1],[]),valu(f"v_mbcnt_hi_u32_b32 v{T+1}, -1, v{T+1}",[T+1],[T+1]),V("v_lshl_add_u32",T,T+1,"4",T),V("v_add_u32",T,str((2*d+g)*1024),T),
            I(f"buffer_store_dwordx4 {vr(x,4)}, v{T}, s[{sO[p]}:{sO[p]+3}], 0 offen{nts}",'vst',[],R(x,4)+[T],tag=('O',p))]
        return [perm(16,x,x+2),perm(16,x+1,x+3)]+[bperm(x+k,241) for k in range(4 if o['sbp']>>p&1 else 0)]+[I(f"buffer_store_dwordx4 {vr(x,4)}, v{(QO if o['sbp']>>p&1 else QD)[p]}, s[{sO[p]}:{sO[p]+3}], 0 offen offset:{d*64+256*g}{nts}",'vst',[],R(x,4)+[QO[p],QD[p]],tag=('O',p))]
    def store2(p,e,qb,X=None,pol=None):
        X=(QA,QB)[p] if X is None else X; A=X+16*e+4*qb; B=A+8; pol=nts if pol is None else pol
        r=[perm(16,A,A+2),perm(16,A+1,A+3),perm(16,B,B+2),perm(16,B+1,B+3)]+[V("v_mov_b32",T+k,B+k) for k in range(4)]
        r+=[I(f"v_mov_b32_dpp v{B+k}, v{A+k} row_shl:4 row_mask:0xf bank_mask:0x5",'perm',[B+k],[A+k,B+k]) for k in range(4)]
        r+=[I(f"v_mov_b32_dpp v{A+k}, v{T+k} row_shr:4 row_mask:0xf bank_mask:0xa",'perm',[A+k],[T+k,A+k]) for k in range(4)]
        st=[I(f"buffer_store_dwordx4 {vr(x,4)}, v{SO[p]}, s[{sO[p]}:{sO[p]+3}], 0 offen offset:{128*e+256*qb+2048*i}{pol}",'vst',[],R(x,4)+[SO[p]],tag=('O',p)) for i,x in ((1,B),(0,A))]
        return r,st
    for j in range(4 if o['dppst'] else 0):
        r,st=store2(0,j//2,j%2); w=o['st1']-o['st0']
        vextra[o['st0']+w*(2*j)//8]+=r+st[:1]; vextra[o['st0']+w*(2*j+1)//8]+=st[1:]
    for j in range(0 if o['dppst'] else 8):
        if o['stpair']: vextra[o['st0']+(o['st1']-o['st0'])*(j//2)//4]+=store(0,(j//4)*2+j%2,(j//2)%2)
        else:
            z=store(0,(j//4)*2+j%2,(j//2)%2); u=o['st0']+(o['st1']-o['st0'])*j//8; vextra[u]+=z[:-1]; extra[u+1].append(z[-1:])
    body=[I("s_barrier",'other',wait=bwait(-1))]+[kread(0,s) for s in range(8)]
    if LAG:
        qb_=[] if o['bq0'] else [qload(0,s) for s in QORD]
        for U in range(-LAG,0):
            if o['qsplit']:
                if U+LAG==0: body+=only('B',qb_[:o['qsplit']])
                if U+LAG==1: body+=only('B',qb_[o['qsplit']:]+bl if o['bqfirst'] else bl+qb_[o['qsplit']:])
            elif U+LAG==o['bqpos']: body+=only('B',qb_+bl if o['bqfirst'] else bl+qb_)
            if U<-1: body+=cbar(U,'B')
        if not (o['qbp']&1 or o['presc']): body+=cbar(-1,'B')
        if o['bq0']!=2 or bl: body+=only('A',[I("s_nop 0",'other',u=R(QA,32))])+only('B',[I("s_nop 0",'other',u=R(QA,32))])
    if o['presc']:
        assert not o['msum'] and not o['qbp']
        for s in QORD: body+=presc(0,s)
        if LAG: body+=cbar(-1,'B')
    if o['qbp']&1:
        for s in QORD: body+=qfix(QA,s)
        if LAG: body+=cbar(-1,'B')
    fpend=[]
    for U in range(NU+1):
        if o['stamps']==4:
            if U in (22,23,24): body+=stamp()
        elif o['stamps'] and U in ([0,1,5,9,13,17,21,25,29,32] if o['stamps']==1 else [0,1,5] if o['stamps']==2 else [0,1,9,17,25,32]): body+=stamp()
        body.append(I(f"s_setprio {o['pm1']}",'other',wait={'LGALL'} if o['lg0'] else None))
        ms=[]; rd=[vread(U-1,j,u2) for j in range(8) for u2 in range(2)] if U>=1 else []
        npre_v=0
        if U<NU:
            q=(QA,QB)[U//16]
            for s in range(8):
                kt,ds=s//4,s%4
                for qb in range(2): dd=S0+8*qb+4*kt; ms.append(mfma16(dd,FRB[s],q+4*(2*ds+qb),(CI[qb] if o['presc'] and U%16>=1 else None) if ds==0 else dd))
        else: rd=[]
        mx=[]
        if U==17 and o['cvspill']: mx=conv(0,3,0)
        for i,m in enumerate(ms):
            body.append(m)
            if i==o['pswitch']: body.append(raw(f"s_setprio {o['pm2']}"))
            if rd: body.append(rd[i])
            if mx: body+=mx[i*len(mx)//16:(i+1)*len(mx)//16]
        if U>=1:
            first=(U-1)%16==0
            if o['msum']: body+=[mfma16(LA[qb],ONE,P0+4*qb,None if first else LA[qb]) for qb in range(2)]
            if o['pvord']:
                for qb in range(2):
                    for j in range(8): dd=O+8*j+4*qb; body.append(mfma16(dd,vfb(j),P0+4*qb,None if first else dd))
            for j in range(0 if o['pvord'] else 8):
                for qb in range(2): dd=O+8*j+4*qb; body.append(mfma16(dd,vfb(j),P0+4*qb,None if first else dd))
                if j%2==1 and j//2<len(mextra[U]): body+=mextra[U][j//2]
                if U==NU and o['fint']:
                    if j==1: body+=fin(1)
                    if j in (3,5,7):
                        d=(j-3)//2; z0,z1=store(1,d,0),store(1,d,1); body+=conv(1,d,1)+fpend+z0[:-1]+z1[:-1]; fpend=z0[-1:]+z1[-1:]
        body.append(raw(f"s_setprio {o['pv']}"))
        if o['stamps']==4 and U in (22,23): body+=stamp()
        body+=cbar(U,'B')
        if o['stamps']==4 and U in (22,23): body+=stamp()
        if U==NU: break
        s=S0; p=U//16; lst=(rebias(R(KAD,4),U+1) if U+1<NU else [])+rebias(R(VAD,8),U)
        if U%16==0:
            for k in (0,3,5): lst+=[V("v_max3_f32",T+i,*( [s+8*i,s+8*i+1,s+8*i+2] if k==0 else [T+i,s+8*i+k,s+8*i+k+1])) for i in range(2)]
            lst+=[V("v_max_f32",T+i,T+i,s+8*i+7) for i in range(2)]+xred("v_max_f32",[T,T+1],[T+2,T+3])
            lst+=[V("v_sub_f32",CI[i]+k,"0",T+i) for k in range(4) for i in range(2)] if o['presc'] else [V("v_mul_f32",MC[i],f"s{sC}",T+i) for i in range(2)]
        def fm(k):
            if o['presc']: return [V("v_add_f32",r,r,CI[k//4]) for r in (s+2*k,s+2*k+1)] if U%16==0 else []
            return [valu(f"v_fma_f32 v{r}, v{r}, s{sC}, -v{MC[k//4]}",[r],[r,MC[k//4]]) for r in (s+2*k,s+2*k+1)]
        def ex(r): return [trans(f"v_exp_f32 v{r}, v{r}",[r],[r])]
        def ad(k): la=L[p][k//4]; return [] if o['msum'] else [V("v_add_f32",la,la,s+2*k),V("v_add_f32",la+1,la+1,s+2*k+1)]
        def cvt(k): return [V("v_cvt_pk_bf16_f32",P0+k,s+2*k,s+2*k+1)]
        units=[fm(0)]
        for k in range(8):
            units+=[ex(s+2*k), fm(k+1) if k<7 else [], ex(s+2*k+1)]
            if k>0: units.append(ad(k-1))
            if k%2==0 and k>0: units.append(cvt(k-2)+cvt(k-1))
        units+=[ad(7),cvt(6)+cvt(7)]
        units=[u for u in units if u]
        side=([[kread(U+1,k)] for k in range(8)] if U+1<NU else [[vread(U,j,u2)] for j in range(8) for u2 in range(2)])
        ex_=extra[U]; sidem=[]
        for k in range(max(len(side),len(ex_))):
            if k<len(ex_): sidem.append(ex_[k])
            if k<len(side): sidem.append(side[k])
        nu=len(units)-o['sidetail']
        for k,u in enumerate(units):
            lst+=u
            if k<nu:
                for z in sidem[k*len(sidem)//nu:(k+1)*len(sidem)//nu]: lst+=z
        if U%16==15 and not o['msum']: lst+=[V("v_add_f32",x,x,x+1) for x in L[p]]+fin(p)
        if U==16:
            pr=fin(0) if o['msum'] else []
            for d in range(3 if o['cvspill'] else 4): pr+=conv(0,d,o['pkcv'])
            lst=lst+pr
        body+=lst+vextra[U]
        if o['stamps']==4 and U in (22,23): body+=stamp()
        body+=cbar(U,'A')
    if o['msum'] and not o['fint']: body+=fin(1)
    if o['dppst']:
        for e in range(2):
            body+=conv(1,2*e,1)+conv(1,2*e+1,1)
            for qb in range(2): r,st=store2(1,e,qb); body+=r+st
    elif o['stpair']:
        for d in (0,2): body+=conv(1,d,1)+conv(1,d+1,1)+store(1,d,0)+store(1,d+1,0)+store(1,d,1)+store(1,d+1,1)
    else:
        pend=fpend
        for d in range(3 if o['fint'] else 0,4):
            z0,z1=store(1,d,0),store(1,d,1); body+=conv(1,d,1)+pend+z0[:-1]+z1[:-1]; pend=z0[-1:]+z1[-1:]
        body+=pend
    post=[]
    if o['stamps']==3:
        post+=stamp(); post.append(I("s_nop 0",'other',wait={'VMALL'})); post+=stamp()
        post+=[raw("s_waitcnt lgkmcnt(0)"), salu(f"s_add_u32 s3, s2, s{sW}"), salu("s_cmp_lg_u32 s3, 133"), raw("s_cbranch_scc1 L_end"),
               salu("s_mov_b32 s8, s4"),salu("s_mov_b32 s9, s5"),salu("s_mov_b32 s10, 256"),salu("s_mov_b32 s11, 0x20000"), V("v_mov_b32",T,"0"), raw("s_mov_b64 exec, 1")]
        for j in range(1,len(stl)):
            post+=[salu(f"s_sub_u32 s3, s{50+4*j}, s50"),salu(f"s_sub_u32 s6, s{52+4*j}, s52"),V("v_mov_b32",T+2,"s3"),V("v_mov_b32",T+3,"s6"),
                   I(f"buffer_store_dwordx2 {vr(T+2,2)}, v{T}, s[8:11], 0 offen offset:{8*(j-1)}",'vst',[],[T,T+2,T+3])]
    elif o['stamps']:
        post+=stamp(); post.append(I("s_nop 0",'other',wait={'VMALL'})); post+=stamp()
        post+= [raw("s_waitcnt lgkmcnt(0)"), salu("s_mov_b32 s8, s4"),salu("s_mov_b32 s9, s5"),salu("s_mov_b32 s10, 0x100000"),salu("s_mov_b32 s11, 0x20000"),
                salu("s_lshl_b32 s3, s2, 11"), salu(f"s_lshr_b32 s6, s{sW}, 2"), salu("s_add_u32 s3, s3, s6"), V("v_mov_b32",T,"s3"), raw("s_mov_b64 exec, 1")]
        for j in range(2*len(stl)):
            post+=[V("v_mov_b32",T+2,f"s{50+2*j}"),V("v_mov_b32",T+3,f"s{51+2*j}"), I(f"buffer_store_dwordx2 {vr(T+2,2)}, v{T}, s[8:11], 0 offen offset:{8*j}",'vst',[],[T,T+2,T+3])]
        post.append(raw("s_mov_b64 exec, -1"))
    slow=[]
    if o['slow'] and not o['stamps']:
        from slowpath import slowpath
        slow=slowpath(locals())
    ins=insert_waits(pre+body+post+slow)
    ins,nn=fix_hazards(ins,verbose=o['verbose'])
    txt=[x.t if x.k=='label' else "    "+x.t for x in ins if x.t]
    hdr=open('cdna_kernels/%s.s.ref'%NAME).read().split('; Override')[0]
    out=hdr+f"; @launch grid=(256,1,1) block=(512,1,1) lds={2*VB}\n.amdgcn_target \"amdgcn-amd-amdhsa--gfx950\"\n.text\n.globl {NAME}_kernel\n.p2align 8\n.type {NAME}_kernel,@function\n{NAME}_kernel:\n"
    out+="\n".join(txt)+"\nL_end:\n    s_endpgm\n"
    out+=f""".section .rodata,"a"
.p2align 6
.amdhsa_kernel {NAME}_kernel
  .amdhsa_next_free_vgpr 256
  .amdhsa_next_free_sgpr 102
  .amdhsa_accum_offset 256
  .amdhsa_group_segment_fixed_size 0
  .amdhsa_kernarg_size 48
  .amdhsa_user_sgpr_count 2
  .amdhsa_user_sgpr_kernarg_segment_ptr 1
  .amdhsa_system_sgpr_workgroup_id_x 1
.end_amdhsa_kernel
"""
    return out,len(ins),nn
if __name__=="__main__":
    path=sys.argv[1]; kw={}
    for s in sys.argv[2:]:
        k,v=s.split('='); kw[k]=float(v) if '.' in v else int(v)
    out,n,nn=gen(**kw); open(path,'w').write(out); print(path,"insts",n,"nops",nn)
```

```python
import sys, math, struct
from asmlib import *
NAME="standalone__mha_softmax__near_ridge"
def f2u(x): return struct.unpack('<I',struct.pack('<f',x))[0]
DEF=dict(cpf=0, per=2, fint=1, nb0=0, qsplit=0, qbp=0, sbp=2, nr=10, dppst=0, qf0=12, shift=1, pv=3, pvord=0, hackst=0, bq0=1, nb=0, bqfirst=1, bqpos=0, lag=2, bq=0, lg0=1, dmam=0, nodma=0, nfr=14, dma_e=3, dma_en=4, dma_s=2, pm1=0, pm2=1, pswitch=8, sidetail=3, cvspill=0, pkcv=0, presc=0, msum=1, ps0=12, nt_dma=1, stpair=0, npre=4, maxdma=4, stamps=0, PD=6, BOFF=4, early=6, prio=0, qn0=7, qn1=15, st0=18, st1=30, nt_st=3, nt_ld=1, share=1, slow=1, force_slow=0, pkadd=0, dmaspread=1.0, m16=1, verbose=0, nosm=0, nold=0)
POL=['',' nt',' sc1',' sc0 sc1',' nt sc1',' sc0 nt sc1',' sc0 nt']
QORD=[0,2,1,3,4,6,5,7]
def gen(**kw):
    o=dict(DEF); o.update(kw); M16=o['m16']; G=2 if M16 else 1
    O=0; QA=64; QB=96; S=[128,144]; P=[160,168]; FR=176; NFR=8
    NKA=4 if M16 else 8; KAD=208; VAD=KAD+NKA; DK=220; DV=221; QO=[222,223]; MC=[224,225]; L=[[226,228],[252,254]]; LA=[226,252]; RI=[230,232]; T=234; CI=[244,248]; ONE=248; sC2=35
    sQ=[8,12]; sK=16; sV=20; sO=[24,28]; sC=32; sW=33; sOFF=34; sFLAG=36
    pre=[]; a=pre.append
    def V(op,d,*src):
        regs=[x for x in src if isinstance(x,int)]
        return valu(f"{op} v{d}, "+", ".join(f"v{x}" if isinstance(x,int) else x for x in src),[d],regs)
    a(raw("s_cmp_ge_u32 s2, 256")); a(raw("s_cbranch_scc1 L_end"))
    a(raw("s_load_dwordx4 s[40:43], s[0:1], 0")); a(raw("s_load_dwordx4 s[44:47], s[0:1], 16")); a(raw(f"s_load_dwordx2 s[4:5], s[0:1], {32 if o['stamps']==3 else 40}"))
    stl=[]
    def stamp():
        n=len(stl); stl.append(n); r=50+4*n; assert r+4<=102
        return [raw(f"s_memtime s[{r}:{r+1}]"),raw(f"s_memrealtime s[{r+2}:{r+3}]")]
    if o['stamps']: pre+=stamp()
    l=128; wv=129; h=130; l16=131; l32=132; t0=133; t1=134; q4=135; t2=136; g4=137; pg=138
    a(V("v_and_b32",l,"63",0)); a(V("v_lshrrev_b32",wv,"6",0)); a(raw("s_nop 0"))
    a(I(f"v_readfirstlane_b32 s{sW}, v{wv}",'rfl',[],[wv]))
    if o['share']:
        a(salu("s_and_b32 s3, s2, 7")); a(salu("s_lshr_b32 s6, s2, 4")); a(salu("s_lshl_b32 s3, s3, 4")); a(salu("s_add_u32 s3, s3, s6"))
        a(salu("s_lshr_b32 s7, s2, 3")); a(salu("s_and_b32 s7, s7, 1"))
    else:
        a(salu("s_lshr_b32 s3, s2, 1")); a(salu("s_and_b32 s7, s2, 1"))
    a(V("v_lshrrev_b32",h,"5",l)); a(V("v_and_b32",l16,"15",l)); a(V("v_and_b32",l32,"31",l)); a(V("v_lshrrev_b32",g4,"4",l))
    a(V("v_lshrrev_b32",t0,"4",0)); a(V("v_and_b32",t1,"15",t0)); a(V("v_xor_b32",t1,t1,l16)); a(V("v_lshlrev_b32",t1,"4",t1)); a(V("v_lshl_add_u32",DK,t0,"8",t1))
    if M16: a(V("v_and_b32",t1,"7",t0)); a(V("v_lshlrev_b32",t1,"1",t1))
    else: a(V("v_and_b32",t1,"3",t0)); a(V("v_lshlrev_b32",t1,"2",t1))
    a(V("v_xor_b32",t1,t1,l16)); a(V("v_lshlrev_b32",t1,"4",t1)); a(V("v_lshl_add_u32",DV,t0,"8",t1))
    if M16:
        a(V("v_and_b32",pg,"1",g4)); a(V("v_lshl_add_u32",pg,pg,"1",h))
        a(V("v_lshrrev_b32",t0,"2",0)); a(V("v_lshlrev_b32",t0,"9",t0)); a(V("v_and_b32",t1,"3",l)); a(V("v_lshl_add_u32",t0,t1,"4",t0))
        a(V("v_lshl_add_u32",240,l16,"2",pg)); a(V("v_lshlrev_b32",240,"2",240))
        a(V("v_and_b32",t2,"1",l)); a(V("v_lshlrev_b32",t2,"7",t2)); a(V("v_and_b32",t1,"2",l)); a(V("v_lshl_add_u32",t2,t1,"5",t2)); a(V("v_and_b32",t1,"60",l)); a(V("v_add_u32",241,t2,t1))
    else:
        a(V("v_lshlrev_b32",t0,"5",wv)); a(V("v_add_u32",t0,t0,l32)); a(V("v_lshlrev_b32",t0,"8",t0)); a(V("v_lshl_add_u32",t0,h,"4",t0))
    a(salu("s_lshl_b32 s6, s7, 16")); a(V("v_add_u32",QO[0],"s6",t0)); a(salu("s_xor_b32 s6, s6, 0x10000")); a(V("v_add_u32",QO[1],"s6",t0))
    a(V("v_lshlrev_b32",t0,"4",wv)); a(V("v_add_u32",t0,t0,l16)); a(V("v_lshlrev_b32",t0,"9",t0)); a(V("v_lshl_add_u32",t0,pg,"4",t0))
    a(V("v_add_u32",243,"s6",t0)); a(V("v_xor_b32",242,"0x10000",243)); QD=[242,243]
    a(raw("s_waitcnt lgkmcnt(0)"))
    if o['stamps']==2: pre+=stamp()
    a(salu("s_mul_i32 s6, s3, 0x40000"))
    for sr,p in ((sK,42),(sV,44)):
        a(salu(f"s_add_u32 s{sr}, s{p}, s6")); a(salu(f"s_addc_u32 s{sr+1}, s{p+1}, 0")); a(salu(f"s_mov_b32 s{sr+2}, 0x40000")); a(salu(f"s_mov_b32 s{sr+3}, 0x20000"))
    a(salu(f"s_lshl_b32 s{sW}, s{sW}, 10"))
    a(salu(f"s_cmp_ge_u32 s{sW}, 4096")); a(raw("s_cselect_b64 vcc, -1, 0"))
    nlab=[0]
    def only(grp,lst):
        if not lst: return []
        nlab[0]+=1; lb=f"L_g{nlab[0]}"
        for x in lst: x.g=grp
        return [raw(f"s_cbranch_vcc{'nz' if grp=='A' else 'z'} {lb}")]+lst+[I(lb+":",'label')]
    LAG=o['lag']; NR=o['nr']; VB=NR*8192; HB=(NR//2)*8192; SO=[240,241]
    nt=POL[o['nt_ld']]
    a(salu(f"s_cselect_b32 s48, {LAG*8192}, 0")); a(salu(f"s_cselect_b32 s49, {VB}, 0")); a(salu(f"s_add_u32 s35, s{sW}, s48")); a(salu("s_sub_u32 s49, s35, s49"))
    def dma2(kind,U):
        if not LAG: return dma(kind,U)
        if not o['shift']: return only('A',dma(kind,U)+dma(kind,U,4096))
        if U+LAG>=32: return only('A',dma(kind,U))
        r=dma(kind,U); r[2].tagB=(kind,U+LAG)
        return [salu(f"s_add_u32 m0, s{35 if U%NR+LAG<NR else 49}, {(0 if kind=='K' else VB)+(U%NR)*8192}"), salu(f"s_add_u32 s{sOFF}, s48, {U*8192}"), r[2]]
    def dma(kind,U,ex=0):
        base=(0 if kind=='K' else VB)+(U%NR)*8192+ex; sr=sK if kind=='K' else sV
        return [salu(f"s_add_u32 m0, s{sW}, {base}"), salu(f"s_mov_b32 s{sOFF}, {U*8192+ex}"),
                I(f"buffer_load_dwordx4 v{DK if kind=='K' else DV}, s[{sr}:{sr+3}], s{sOFF} offen{POL[o['nt_dma']]} lds",'dma',[],[DK,DV],tag=(kind,U))]
    if o['cpf']:
        pf=[raw("s_getpc_b64 s[6:7]"), V("v_and_b32",T,"255",0), V("v_lshlrev_b32",T,"7",T), V("v_mov_b32",T+1,"s7"),
            valu(f"v_add_co_u32 v{T}, s[98:99], s6, v{T}",[T],[T]), raw("s_nop 1"), valu(f"v_addc_co_u32 v{T+1}, s[98:99], v{T+1}, 0, s[98:99]",[T+1],[T+1]),
            I(f"global_load_dword v{T+2}, v[{T}:{T+1}], off",'vld',[T+2],[T,T+1])]
        pre+=only('B',pf)
    pre+=dma('K',0)+dma('K',1)
    if o['stamps']==2: pre+=stamp()
    a(salu("s_mul_i32 s6, s3, 253952"))
    for srs,p in ((sQ,40),(sO,46)):
        a(salu(f"s_add_u32 s{srs[0]}, s{p}, s6")); a(salu(f"s_addc_u32 s{srs[0]+1}, s{p+1}, 0")); a(salu(f"s_mov_b32 s{srs[0]+2}, 126976")); a(salu(f"s_mov_b32 s{srs[0]+3}, 0x20000"))
        a(salu(f"s_add_u32 s{srs[1]}, s{srs[0]}, 126976")); a(salu(f"s_addc_u32 s{srs[1]+1}, s{srs[0]+1}, 0")); a(salu(f"s_mov_b32 s{srs[1]+2}, 126976")); a(salu(f"s_mov_b32 s{srs[1]+3}, 0x20000"))
    def bperm(x,idx): return I(f"ds_bpermute_b32 v{x}, v{idx}, v{x}",'ds',[x],[x,idx])
    def qfix(X,s): return [bperm(X+4*s+k,240) for k in range(4)]
    def qload(p,s):
        d=(QA,QB)[p]+4*s; off=(s%2)*256+(s//2)*64 if M16 else s*32
        qo=(QO if o['qbp']>>p&1 else QD)[p]
        return I(f"buffer_load_dwordx4 {vr(d,4)}, v{qo}, s[{sQ[p]}:{sQ[p]+3}], 0 offen offset:{off}{nt}",'vld',R(d,4),[qo])
    pre+=only('A',[qload(0,s) for s in QORD]) if LAG and o['bq0']!=2 else [qload(0,s) for s in QORD]
    if o['stamps']==2: pre+=stamp()
    issued={('K',0),('K',1)}
    order=[(kd,u) for U in range(2,9) for kd,u in (('V',U-2),('K',U)) if u<8]
    for kd,u in order[:o['npre']]: pre+=dma(kd,u); issued.add((kd,u))
    if LAG and o['bq0']==1: pre+=only('B',[qload(0,s) for s in QORD])
    bl=[]
    for kd,u in order[o['npre']:o['npre']+o['nb0']]: bl+=dma(kd,u)+dma(kd,u,-4096); issued.add((kd,u))
    pre+=only('B',bl); bl=[]
    for kd,u in order[o['npre']+o['nb0']:o['npre']+o['nb0']+o['nb']]: bl+=dma(kd,u)+dma(kd,u,-4096); issued.add((kd,u))
    if o['stamps']==2:
        pre+=stamp(); a(I("s_nop 0",'other',wait={('K',0)})); pre+=stamp(); a(I("s_nop 0",'other',u=[QA])); pre+=stamp(); a(I("s_nop 0",'other',u=[QA+28])); pre+=stamp()
    a(V("v_lshrrev_b32",q4,"2",l16))
    if M16:
        for s in range(4):
            a(V("v_add_u32",t0,str(4*s),pg)); a(V("v_xor_b32",t0,t0,l16)); a(V("v_lshlrev_b32",t0,"4",t0)); a(V("v_lshl_add_u32",KAD+s,l16,"8",t0))
        a(V("v_lshrrev_b32",t1,"2",l))
        a(V("v_lshlrev_b32",t0,"8",t1)); a(V("v_and_b32",t2,"3",l)); a(V("v_lshl_add_u32",t0,t2,"3",t0)); a(V("v_add_u32",t0,str(VB),t0))
        a(V("v_and_b32",t1,"7",t1))
        for d in range(8): a(V("v_xor_b32",t2,str(d),t1)); a(V("v_lshl_add_u32",VAD+d,t2,"5",t0))
    else:
        for s in range(8):
            a(V("v_add_u32",t0,str(2*s),h)); a(V("v_xor_b32",t0,t0,l16)); a(V("v_lshlrev_b32",t0,"4",t0)); a(V("v_lshl_add_u32",KAD+s,l32,"8",t0))
        a(V("v_lshl_add_u32",t0,h,"2",q4)); a(V("v_lshlrev_b32",t0,"8",t0)); a(V("v_and_b32",t1,"16",l)); a(V("v_lshl_add_u32",t0,t1,"1",t0))
        a(V("v_and_b32",t1,"1",l)); a(V("v_lshl_add_u32",t0,t1,"4",t0)); a(V("v_and_b32",t1,"2",l)); a(V("v_lshl_add_u32",t0,t1,"2",t0))
        a(V("v_add_u32",t0,"0x10000",t0))
        for d in range(4): a(V("v_xor_b32",t2,str(d),q4)); a(V("v_lshl_add_u32",VAD+d,t2,"6",t0))
    c=(128**-0.5)*math.log2(math.e)
    a(salu(f"s_mov_b32 s{sC}, 0x{f2u(c):08x}"))
    chi=f2u(c)>>16; clo=f2u(c-struct.unpack('<f',struct.pack('<I',chi<<16))[0]); clo=(clo+0x8000)>>16
    def presc(p,s):
        r=[]
        for k in range(4):
            x=(QA,QB)[p]+4*s+k; t=T+2*(k%2)
            if o['presc']==1:
                r+=[I(f"v_dot2_f32_bf16 v{t}, v{x}, s{sC2}, 0 op_sel:[0,0,0] op_sel_hi:[0,1,0]",'dot',[t],[x]), I(f"v_dot2_f32_bf16 v{t+1}, v{x}, s{sC2}, 0 op_sel:[1,0,0] op_sel_hi:[1,1,0]",'dot',[t+1],[x])]
            elif p==0:
                r+=[V("v_lshlrev_b32",t,"16",x),V("v_and_b32",t+1,"0xffff0000",x),valu(f"v_pk_mul_f32 {vr(t,2)}, {vr(t,2)}, s[{sC}:{sC+1}] op_sel_hi:[1,0]",[t,t+1],[t,t+1])]
            else:
                r+=[V("v_lshlrev_b32",t,"16",x),V("v_and_b32",t+1,"0xffff0000",x),V("v_mul_f32",t,f"s{sC}",t),V("v_mul_f32",t+1,f"s{sC}",t+1)]
            if k>0: r.append(V("v_cvt_pk_bf16_f32",x-1,T+2*((k-1)%2),T+2*((k-1)%2)+1))
        r.append(V("v_cvt_pk_bf16_f32",(QA,QB)[p]+4*s+3,T+2,T+3))
        return r
    if o['msum']:
        for k in range(4): a(V("v_mov_b32",ONE+k,"0x3f803f80"))
    else:
        for p in range(2):
            for x in L[p]: a(V("v_mov_b32",x,"0")); a(V("v_mov_b32",x+1,"0"))

    if o['prio']:
        a(salu(f"s_cmp_ge_u32 s{sW}, 4096")); a(raw("s_cbranch_scc0 L_prio")); a(raw("s_setprio 1")); a(I("L_prio:",'label'))
    NU=32; NFR=o['nfr']; FRB=[FR+4*k for k in range(8)]+[144,148,152,156,168,172]; S0=S[0]; P0=P[0]
    def perm(n,x,y): return I(f"v_permlane{n}_swap_b32 v{x}, v{y}",'perm',[x,y],[x,y])
    def xred(op,regs,tmps):
        r=[]
        for n in (16,32): r+=[V("v_mov_b32",t,x) for x,t in zip(regs,tmps)]+[perm(n,x,t) for x,t in zip(regs,tmps)]+[V(op,x,x,t) for x,t in zip(regs,tmps)]
        return r
    def bias(U): return HB if (NR>8 and U%NR>=NR//2) else 0
    def rebias(regs,U):
        d=bias(U)-bias(U-1) if U>0 else 0
        return [V("v_add_u32" if d>0 else "v_subrev_u32",x,str(abs(d)),x) for x in regs] if d else []
    def kread(U,s): ad=KAD+s%4; fb=FRB[s]; return I(f"ds_read_b128 {vr(fb,4)}, v{ad} offset:{(U%NR)*8192-bias(U)+(s//4)*4096}",'ds',R(fb,4),[ad])
    def vfb(j): return FRB[(8+j)%NFR]
    def vread(U,j,u2): fb=vfb(j)+2*u2; return I(f"ds_read_b64_tr_b16 {vr(fb,2)}, v{VAD+j} offset:{(U%NR)*8192-bias(U)+u2*4096}",'ds',R(fb,2),[VAD+j])
    bs=[U for U in range(-1,NU-1) if U<o['early'] or (U-o['early'])%o['per']==o['per']-1]
    def bwait(U):
        nx=[x for x in bs if x>U]; U2=nx[0] if nx else NU
        return {('K',x) for x in range(U+2 if U>=0 else 0,min(U2+2,NU))}|{('V',x) for x in range(max(U,0),min(U2,NU))}
    def cbar(U,grp):
        if grp=='B': U+=LAG
        return only(grp,[I("s_barrier",'other',wait=bwait(U))]) if U in bs else []
    extra={U:[] for U in range(-1,NU+1)}
    mextra={U:[] for U in range(-1,NU+2)}
    vextra={U:[] for U in range(-1,NU+1)}
    preiss=set(issued); mainiss=[]
    for U in range(0,NU):
        b=max(x for x in bs if x<=U-1)
        todo=sorted([(X-1 if kd=='K' else X+0.5,kd,X) for X in range(NU) for kd in 'KV' if (kd,X) not in issued and X-NR<=max((b if kd=='K' else b-1)-LAG,-1)])
        for _,kd,X in todo[:(o['dma_e'] if U<o['dma_en'] else o['dma_s'])]: issued.add((kd,X)); mainiss.append((kd,X,U)); (mextra if o['dmam'] else extra)[U+o['dmam']].append(dma2(kd,X) if not (o['nodma'] and X>=8) else [I("s_nop 0",'dma',tag=(kd,X))])
    assert len(issued)==2*NU
    if LAG and o['shift']:
        Bhave=set(preiss)|{(kd,X+LAG) for kd,X,U in mainiss}
        for kd,X in sorted([(kd,X) for kd in 'KV' for X in range(NU) if (kd,X) not in Bhave],key=lambda z:z[1]-1 if z[0]=='K' else z[1]+0.5): assert X<NR; bl+=dma(kd,X)
        for kd,X,U in mainiss:
            b2=max(x for x in bs if x<=U+LAG); assert X+LAG-NR<=max((b2 if kd=='K' else b2-1)-LAG,-1),(kd,X,U)
    for j in range(4): extra[o['qn0']+(o['qn1']-o['qn0'])*j//4].append([qload(1,QORD[2*j]),qload(1,QORD[2*j+1])])
    for j,s in enumerate(QORD if o['qbp']&2 else []): extra[o['qf0']+(16-o['qf0'])*j//8].append(qfix(QB,s))
    if o['presc']:
        for j,s in enumerate(QORD): vextra[o['ps0']+(16-o['ps0'])*j//8]+=presc(1,s)
    nts=POL[o['nt_st']]
    def fin(p):
        l0,l1=LA if o['msum'] else L[p]
        thr=V("v_mov_b32",T+4,f"0x{f2u(2.0**(-1 if o['force_slow'] else 30)):08x}")
        r=[] if o['msum'] else xred("v_add_f32",[l0,l1],[T+2,T+3])
        return r+[trans(f"v_rcp_f32 v{RI[0]}, v{l0}",[RI[0]],[l0]),trans(f"v_rcp_f32 v{RI[1]}, v{l1}",[RI[1]],[l1]),thr,V("v_add_f32",T+5,l0,l1),
                  valu(f"v_cmp_nlt_f32 s[{sFLAG+2*p}:{sFLAG+2*p+1}], v{T+5}, v{T+4}",[],[T+5,T+4])]
    def conv(p,d,pk):
        X=(QA,QB)[p]; cv=[]; pend=None
        for k in range(8):
            r=O+16*d+2*k; qb=(k//2)%2; ri=RI[qb]; x=X+8*d+4*qb+2*(k//4)+k%2
            if pk: cv.append(valu(f"v_pk_mul_f32 {vr(r,2)}, {vr(r,2)}, {vr(ri,2)} op_sel_hi:[1,0]",[r,r+1],[r,r+1,ri]))
            else: cv+=[V("v_mul_f32",r,r,ri),V("v_mul_f32",r+1,r+1,ri)]
            if pend: cv.append(pend)
            pend=V("v_cvt_pk_bf16_f32",x,r,r+1)
        return cv+[pend]
    def store(p,d,g):
        x=(QA,QB)[p]+8*d+4*g
        if o['hackst']: return [V("v_and_b32",T,"0xffffe000",QO[p]),valu(f"v_mbcnt_lo_u32_b32 v{T+1}, -1, 0",[T+1],[]),valu(f"v_mbcnt_hi_u32_b32 v{T+1}, -1, v{T+1}",[T+1],[T+1]),V("v_lshl_add_u32",T,T+1,"4",T),V("v_add_u32",T,str((2*d+g)*1024),T),
            I(f"buffer_store_dwordx4 {vr(x,4)}, v{T}, s[{sO[p]}:{sO[p]+3}], 0 offen{nts}",'vst',[],R(x,4)+[T],tag=('O',p))]
        return [perm(16,x,x+2),perm(16,x+1,x+3)]+[bperm(x+k,241) for k in range(4 if o['sbp']>>p&1 else 0)]+[I(f"buffer_store_dwordx4 {vr(x,4)}, v{(QO if o['sbp']>>p&1 else QD)[p]}, s[{sO[p]}:{sO[p]+3}], 0 offen offset:{d*64+256*g}{nts}",'vst',[],R(x,4)+[QO[p],QD[p]],tag=('O',p))]
    def store2(p,e,qb,X=None,pol=None):
        X=(QA,QB)[p] if X is None else X; A=X+16*e+4*qb; B=A+8; pol=nts if pol is None else pol
        r=[perm(16,A,A+2),perm(16,A+1,A+3),perm(16,B,B+2),perm(16,B+1,B+3)]+[V("v_mov_b32",T+k,B+k) for k in range(4)]
        r+=[I(f"v_mov_b32_dpp v{B+k}, v{A+k} row_shl:4 row_mask:0xf bank_mask:0x5",'perm',[B+k],[A+k,B+k]) for k in range(4)]
        r+=[I(f"v_mov_b32_dpp v{A+k}, v{T+k} row_shr:4 row_mask:0xf bank_mask:0xa",'perm',[A+k],[T+k,A+k]) for k in range(4)]
        st=[I(f"buffer_store_dwordx4 {vr(x,4)}, v{SO[p]}, s[{sO[p]}:{sO[p]+3}], 0 offen offset:{128*e+256*qb+2048*i}{pol}",'vst',[],R(x,4)+[SO[p]],tag=('O',p)) for i,x in ((1,B),(0,A))]
        return r,st
    for j in range(4 if o['dppst'] else 0):
        r,st=store2(0,j//2,j%2); w=o['st1']-o['st0']
        vextra[o['st0']+w*(2*j)//8]+=r+st[:1]; vextra[o['st0']+w*(2*j+1)//8]+=st[1:]
    for j in range(0 if o['dppst'] else 8):
        if o['stpair']: vextra[o['st0']+(o['st1']-o['st0'])*(j//2)//4]+=store(0,(j//4)*2+j%2,(j//2)%2)
        else:
            z=store(0,(j//4)*2+j%2,(j//2)%2); u=o['st0']+(o['st1']-o['st0'])*j//8; vextra[u]+=z[:-1]; extra[u+1].append(z[-1:])
    body=[I("s_barrier",'other',wait=bwait(-1))]+[kread(0,s) for s in range(8)]
    if LAG:
        qb_=[] if o['bq0'] else [qload(0,s) for s in QORD]
        for U in range(-LAG,0):
            if o['qsplit']:
                if U+LAG==0: body+=only('B',qb_[:o['qsplit']])
                if U+LAG==1: body+=only('B',qb_[o['qsplit']:]+bl if o['bqfirst'] else bl+qb_[o['qsplit']:])
            elif U+LAG==o['bqpos']: body+=only('B',qb_+bl if o['bqfirst'] else bl+qb_)
            if U<-1: body+=cbar(U,'B')
        if not (o['qbp']&1 or o['presc']): body+=cbar(-1,'B')
        if o['bq0']!=2 or bl: body+=only('A',[I("s_nop 0",'other',u=R(QA,32))])+only('B',[I("s_nop 0",'other',u=R(QA,32))])
    if o['presc']:
        assert not o['msum'] and not o['qbp']
        for s in QORD: body+=presc(0,s)
        if LAG: body+=cbar(-1,'B')
    if o['qbp']&1:
        for s in QORD: body+=qfix(QA,s)
        if LAG: body+=cbar(-1,'B')
    fpend=[]
    for U in range(NU+1):
        if o['stamps']==4:
            if U in (22,23,24): body+=stamp()
        elif o['stamps'] and U in ([0,1,5,9,13,17,21,25,29,32] if o['stamps']==1 else [0,1,5] if o['stamps']==2 else [0,1,9,17,25,32]): body+=stamp()
        body.append(I(f"s_setprio {o['pm1']}",'other',wait={'LGALL'} if o['lg0'] else None))
        ms=[]; rd=[vread(U-1,j,u2) for j in range(8) for u2 in range(2)] if U>=1 else []
        npre_v=0
        if U<NU:
            q=(QA,QB)[U//16]
            for s in range(8):
                kt,ds=s//4,s%4
                for qb in range(2): dd=S0+8*qb+4*kt; ms.append(mfma16(dd,FRB[s],q+4*(2*ds+qb),(CI[qb] if o['presc'] and U%16>=1 else None) if ds==0 else dd))
        else: rd=[]
        mx=[]
        if U==17 and o['cvspill']: mx=conv(0,3,0)
        for i,m in enumerate(ms):
            body.append(m)
            if i==o['pswitch']: body.append(raw(f"s_setprio {o['pm2']}"))
            if rd: body.append(rd[i])
            if mx: body+=mx[i*len(mx)//16:(i+1)*len(mx)//16]
        if U>=1:
            first=(U-1)%16==0
            if o['msum']: body+=[mfma16(LA[qb],ONE,P0+4*qb,None if first else LA[qb]) for qb in range(2)]
            if o['pvord']:
                for qb in range(2):
                    for j in range(8): dd=O+8*j+4*qb; body.append(mfma16(dd,vfb(j),P0+4*qb,None if first else dd))
            for j in range(0 if o['pvord'] else 8):
                for qb in range(2): dd=O+8*j+4*qb; body.append(mfma16(dd,vfb(j),P0+4*qb,None if first else dd))
                if j%2==1 and j//2<len(mextra[U]): body+=mextra[U][j//2]
                if U==NU and o['fint']:
                    if j==1: body+=fin(1)
                    if j in (3,5,7):
                        d=(j-3)//2; z0,z1=store(1,d,0),store(1,d,1); body+=conv(1,d,1)+fpend+z0[:-1]+z1[:-1]; fpend=z0[-1:]+z1[-1:]
        body.append(raw(f"s_setprio {o['pv']}"))
        if o['stamps']==4 and U in (22,23): body+=stamp()
        body+=cbar(U,'B')
        if o['stamps']==4 and U in (22,23): body+=stamp()
        if U==NU: break
        s=S0; p=U//16; lst=(rebias(R(KAD,4),U+1) if U+1<NU else [])+rebias(R(VAD,8),U)
        if U%16==0:
            for k in (0,3,5): lst+=[V("v_max3_f32",T+i,*( [s+8*i,s+8*i+1,s+8*i+2] if k==0 else [T+i,s+8*i+k,s+8*i+k+1])) for i in range(2)]
            lst+=[V("v_max_f32",T+i,T+i,s+8*i+7) for i in range(2)]+xred("v_max_f32",[T,T+1],[T+2,T+3])
            lst+=[V("v_sub_f32",CI[i]+k,"0",T+i) for k in range(4) for i in range(2)] if o['presc'] else [V("v_mul_f32",MC[i],f"s{sC}",T+i) for i in range(2)]
        def fm(k):
            if o['presc']: return [V("v_add_f32",r,r,CI[k//4]) for r in (s+2*k,s+2*k+1)] if U%16==0 else []
            return [valu(f"v_fma_f32 v{r}, v{r}, s{sC}, -v{MC[k//4]}",[r],[r,MC[k//4]]) for r in (s+2*k,s+2*k+1)]
        def ex(r): return [trans(f"v_exp_f32 v{r}, v{r}",[r],[r])]
        def ad(k): la=L[p][k//4]; return [] if o['msum'] else [V("v_add_f32",la,la,s+2*k),V("v_add_f32",la+1,la+1,s+2*k+1)]
        def cvt(k): return [V("v_cvt_pk_bf16_f32",P0+k,s+2*k,s+2*k+1)]
        units=[fm(0)]
        for k in range(8):
            units+=[ex(s+2*k), fm(k+1) if k<7 else [], ex(s+2*k+1)]
            if k>0: units.append(ad(k-1))
            if k%2==0 and k>0: units.append(cvt(k-2)+cvt(k-1))
        units+=[ad(7),cvt(6)+cvt(7)]
        units=[u for u in units if u]
        side=([[kread(U+1,k)] for k in range(8)] if U+1<NU else [[vread(U,j,u2)] for j in range(8) for u2 in range(2)])
        ex_=extra[U]; sidem=[]
        for k in range(max(len(side),len(ex_))):
            if k<len(ex_): sidem.append(ex_[k])
            if k<len(side): sidem.append(side[k])
        nu=len(units)-o['sidetail']
        for k,u in enumerate(units):
            lst+=u
            if k<nu:
                for z in sidem[k*len(sidem)//nu:(k+1)*len(sidem)//nu]: lst+=z
        if U%16==15 and not o['msum']: lst+=[V("v_add_f32",x,x,x+1) for x in L[p]]+fin(p)
        if U==16:
            pr=fin(0) if o['msum'] else []
            for d in range(3 if o['cvspill'] else 4): pr+=conv(0,d,o['pkcv'])
            lst=lst+pr
        body+=lst+vextra[U]
        if o['stamps']==4 and U in (22,23): body+=stamp()
        body+=cbar(U,'A')
    if o['msum'] and not o['fint']: body+=fin(1)
    if o['dppst']:
        for e in range(2):
            body+=conv(1,2*e,1)+conv(1,2*e+1,1)
            for qb in range(2): r,st=store2(1,e,qb); body+=r+st
    elif o['stpair']:
        for d in (0,2): body+=conv(1,d,1)+conv(1,d+1,1)+store(1,d,0)+store(1,d+1,0)+store(1,d,1)+store(1,d+1,1)
    else:
        pend=fpend
        for d in range(3 if o['fint'] else 0,4):
            z0,z1=store(1,d,0),store(1,d,1); body+=conv(1,d,1)+pend+z0[:-1]+z1[:-1]; pend=z0[-1:]+z1[-1:]
        body+=pend
    post=[]
    if o['stamps']==3:
        post+=stamp(); post.append(I("s_nop 0",'other',wait={'VMALL'})); post+=stamp()
        post+=[raw("s_waitcnt lgkmcnt(0)"), salu(f"s_add_u32 s3, s2, s{sW}"), salu("s_cmp_lg_u32 s3, 133"), raw("s_cbranch_scc1 L_end"),
               salu("s_mov_b32 s8, s4"),salu("s_mov_b32 s9, s5"),salu("s_mov_b32 s10, 256"),salu("s_mov_b32 s11, 0x20000"), V("v_mov_b32",T,"0"), raw("s_mov_b64 exec, 1")]
        for j in range(1,len(stl)):
            post+=[salu(f"s_sub_u32 s3, s{50+4*j}, s50"),salu(f"s_sub_u32 s6, s{52+4*j}, s52"),V("v_mov_b32",T+2,"s3"),V("v_mov_b32",T+3,"s6"),
                   I(f"buffer_store_dwordx2 {vr(T+2,2)}, v{T}, s[8:11], 0 offen offset:{8*(j-1)}",'vst',[],[T,T+2,T+3])]
    elif o['stamps']:
        post+=stamp(); post.append(I("s_nop 0",'other',wait={'VMALL'})); post+=stamp()
        post+= [raw("s_waitcnt lgkmcnt(0)"), salu("s_mov_b32 s8, s4"),salu("s_mov_b32 s9, s5"),salu("s_mov_b32 s10, 0x100000"),salu("s_mov_b32 s11, 0x20000"),
                salu("s_lshl_b32 s3, s2, 11"), salu(f"s_lshr_b32 s6, s{sW}, 2"), salu("s_add_u32 s3, s3, s6"), V("v_mov_b32",T,"s3"), raw("s_mov_b64 exec, 1")]
        for j in range(2*len(stl)):
            post+=[V("v_mov_b32",T+2,f"s{50+2*j}"),V("v_mov_b32",T+3,f"s{51+2*j}"), I(f"buffer_store_dwordx2 {vr(T+2,2)}, v{T}, s[8:11], 0 offen offset:{8*j}",'vst',[],[T,T+2,T+3])]
        post.append(raw("s_mov_b64 exec, -1"))
    slow=[]
    if o['slow'] and not o['stamps']:
        from slowpath import slowpath
        slow=slowpath(locals())
    ins=insert_waits(pre+body+post+slow)
    ins,nn=fix_hazards(ins,verbose=o['verbose'])
    txt=[x.t if x.k=='label' else "    "+x.t for x in ins if x.t]
    hdr=open('cdna_kernels/%s.s.ref'%NAME).read().split('; Override')[0]
    out=hdr+f"; @launch grid=(256,1,1) block=(512,1,1) lds={2*VB}\n.amdgcn_target \"amdgcn-amd-amdhsa--gfx950\"\n.text\n.globl {NAME}_kernel\n.p2align 8\n.type {NAME}_kernel,@function\n{NAME}_kernel:\n"
    out+="\n".join(txt)+"\nL_end:\n    s_endpgm\n"
    out+=f""".section .rodata,"a"
.p2align 6
.amdhsa_kernel {NAME}_kernel
  .amdhsa_next_free_vgpr 256
  .amdhsa_next_free_sgpr 102
  .amdhsa_accum_offset 256
  .amdhsa_group_segment_fixed_size 0
  .amdhsa_kernarg_size 48
  .amdhsa_user_sgpr_count 2
  .amdhsa_user_sgpr_kernarg_segment_ptr 1
  .amdhsa_system_sgpr_workgroup_id_x 1
.end_amdhsa_kernel
"""
    return out,len(ins),nn
if __name__=="__main__":
    path=sys.argv[1]; kw={}
    for s in sys.argv[2:]:
        k,v=s.split('='); kw[k]=float(v) if '.' in v else int(v)
    out,n,nn=gen(**kw); open(path,'w').write(out); print(path,"insts",n,"nops",nn)
```

```python
import re
class I:
    __slots__=('t','k','d','u','tag','wait','c','srcc','g','tagB')
    def __init__(s,t,k,d=(),u=(),tag=None,wait=None,c=None,srcc=()):
        s.t=t; s.k=k; s.d=frozenset(d); s.u=frozenset(u); s.tag=tag; s.wait=wait; s.srcc=frozenset(srcc); s.g=None; s.tagB=None
        s.c = c if c is not None else {'mfma':8,'trans':8,'valu':4,'perm':4,'ds':4,'vld':8,'dma':8,'vst':8,'salu':2,'other':2}.get(k,4)
def R(a,n=1): return list(range(a,a+n))
def vr(a,n=1): return f"v{a}" if n==1 else f"v[{a}:{a+n-1}]"
def mfma(D,A,B,C=None):
    c = '0' if C is None else vr(C,16)
    cu = [] if C is None else R(C,16)
    return I(f"v_mfma_f32_32x32x16_bf16 {vr(D,16)}, {vr(A,4)}, {vr(B,4)}, {c}",'mfma',R(D,16),R(A,4)+R(B,4)+cu,srcc=cu)
def mfma16(D,A,B,C=None):
    c = '0' if C is None else vr(C,4)
    cu = [] if C is None else R(C,4)
    return I(f"v_mfma_f32_16x16x32_bf16 {vr(D,4)}, {vr(A,4)}, {vr(B,4)}, {c}",'mfma',R(D,4),R(A,4)+R(B,4)+cu,srcc=cu)
def valu(t,d,u): return I(t,'valu',d,u)
def trans(t,d,u): return I(t,'trans',d,u)
def salu(t): return I(t,'salu')
def raw(t): return I(t,'other')

def insert_waits(ins):
    out=[]; lg=[]; vm={'A':[],'B':[]}; seen={'A':set(),'B':set()}; alltags={'A':set(),'B':set()}
    for x in ins:
        if x.k=='dma':
            for g in ('AB' if x.g is None else x.g): alltags[g].add(x.tagB if g=='B' and x.tagB else x.tag)
    for x in ins:
        gs='AB' if x.g is None else x.g
        if x.k=='reset':
            lg=[]; vm={'A':[],'B':[]}; out.append(x); continue
        if x.wait:
            for t in x.wait:
                if not isinstance(t,str):
                    assert t in alltags['A']|alltags['B'], t
                    for g in gs: assert t in seen[g] or t not in alltags[g], ('barrier waits on unissued dma',t,g)
        need_lg=None; need_vm=None; touched=x.d|x.u
        for i,(regs,tag) in enumerate(lg):
            if regs & touched: need_lg=len(lg)-1-i
        for g in gs:
            q=vm[g]
            for i,(regs,tag) in enumerate(q):
                if regs & touched or (x.wait and tag in x.wait): n=len(q)-1-i; need_vm=n if need_vm is None else min(need_vm,n)
            if x.wait and 'VMALL' in x.wait and q: need_vm=0
        if x.wait and 'LGALL' in x.wait and lg: need_lg=0
        parts=[]
        if need_vm is not None:
            need_vm=min(need_vm,63); parts.append(f"vmcnt({need_vm})")
            for g in gs: vm[g]=vm[g][max(len(vm[g])-need_vm,0):] if need_vm else []
        if need_lg is not None:
            assert x.g is None
            need_lg=min(need_lg,15); parts.append(f"lgkmcnt({need_lg})"); lg=lg[len(lg)-need_lg:] if need_lg else []
        if parts:
            w=I("s_waitcnt "+" ".join(parts),'wait'); w.g=x.g; out.append(w)
        out.append(x)
        if x.k=='ds': assert x.g is None; lg.append((x.d,x.tag))
        elif x.k in('vld','dma','vst'):
            for g in gs:
                tg=x.tagB if g=='B' and x.tagB else x.tag
                vm[g].append((x.d if x.k=='vld' else frozenset(),tg)); assert len(vm[g])<=63
                if x.k=='dma': seen[g].add(tg)
    return out

def states(x):
    if x.k in ('label','reset','comment'): return 0
    m=re.match(r's_nop (\d+)',x.t)
    return int(m.group(1))+1 if m else 1

def fix_hazards(ins, verbose=False):
    out=[]; nn=0
    VAL=('valu','trans','perm','dot')
    for x in ins:
        need=0; dist=0
        for p in reversed(out):
            if dist>=20: break
            req=0
            if p.k=='mfma':
                big=len(p.d)==16; r1=12 if big else 8
                if x.k=='mfma':
                    if (p.d & (x.u - x.srcc)): req=r1
                    elif (p.d & x.srcc) and p.d!=x.srcc: req=r1-2
                    elif (p.d & x.d) and not (p.d & x.srcc): req=r1
                elif (p.d & (x.u|x.d)): req=r1
                if x.k in VAL and (p.srcc & x.d): req=max(req,7 if big else 3)
            elif p.k in VAL:
                if x.k=='mfma' and (p.d & x.u): req=2
                if x.k=='perm' and (p.d & (x.u|x.d)): req=2
                if p.k=='trans' and x.k in ('valu','perm') and (p.d & x.u): req=max(req,1)
                if p.k=='dot' and (p.d & (x.u|x.d)): req=max(req,3)
                if x.k=='rfl' and (p.d & x.u): req=max(req,1)
            elif p.k=='vst':
                if (p.u & x.d): req=2
            elif p.k=='salu':
                if 'm0' in p.t.split(',')[0] and x.k=='dma': req=1
            need=max(need,req-dist)
            if p.g is None or p.g==x.g: dist+=states(p)
        if need>0:
            nn+=1
            if verbose: print("nop",need,"before",x.t)
            w=I(f"s_nop {need-1}",'other'); w.g=x.g; out.append(w)
        out.append(x)
    return out,nn

def weave(mf, fill, lead=0):
    n=len(mf)
    gaps=[[] for _ in range(n+1)]
    total=sum(f[0].c for f in fill)
    per = total/ max(n,1)
    cum=0; g=0
    his=[f[2] for f in fill]
    for i in range(len(fill)-2,-1,-1): his[i]=min(his[i],his[i+1])
    for i,(x,lo,hi) in enumerate(fill):
        want = int((cum + x.c*0.5)/per)+1-lead if per>0 else 1
        want=max(want,lo,g); want=min(want,his[i],n)
        assert want>=lo and want>=g, (x.t,lo,hi,g,want)
        g=want; gaps[g].append(x); cum+=x.c
    out=[]
    for g in range(n+1):
        if g>0: out.append(mf[g-1])
        out+=gaps[g]
    return out

def merge(*streams):
    items=[]
    for si,(st,w0,w1) in enumerate(streams):
        tot=sum(f[0].c for f in st) or 1
        cum=0
        for j,f in enumerate(st):
            pos = w0+(w1-w0)*(cum+f[0].c*0.5)/tot
            pos=max(pos,f[1]); pos=min(pos,f[2]+0.99)
            items.append([pos,si,j,f]); cum+=f[0].c
        last=-1
        for it in items:
            if it[1]==si:
                it[0]=max(it[0],last); last=it[0]
    items.sort(key=lambda z:(z[0],z[1],z[2]))
    return items
def place(mf, streams):
    n=len(mf); gaps=[[] for _ in range(n+1)]
    for pos,si,j,f in merge(*streams):
        g=min(max(int(pos),0),n)
        assert f[1]<=g<=max(f[2],f[1]), (f[0].t,f[1],f[2],g)
        gaps[g].append(f[0])
    out=[]
    for g in range(n+1):
        if g>0: out.append(mf[g-1])
        out+=gaps[g]
    return out
```

```python
from asmlib import *
def slowpath(e):
    g=type('E',(),e); V=e['V']; o=e['o']
    O,QA,QB,S0,P0,FRB,KAD,VAD,T,LA,ONE,RI,MC,QO=[e[k] for k in "O QA QB S0 P0 FRB KAD VAD T LA ONE RI MC QO".split()]
    sQ,sO,sK,sV,sC,sW,sOFF,sFLAG=[e[k] for k in "sQ sO sK sV sC sW sOFF sFLAG".split()]
    full=lambda: [raw("s_waitcnt vmcnt(0) lgkmcnt(0)"),raw("s_nop 7"),raw("s_nop 7"),I("",'reset')]
    r=[raw("s_barrier"), salu(f"s_or_b64 s[48:49], s[{sFLAG}:{sFLAG+1}], s[{sFLAG+2}:{sFLAG+3}]"), raw("s_cbranch_scc0 L_end")]+full()
    VK=QB; VV=QB+8; MO=QB+16; AL=QB+18; l=QB+20; l16=QB+21; t0=QB+22; t1=QB+23; T=QB+24
    r+=[salu(f"s_lshl_b32 s48, s{sW}, 3")]
    r+=[salu(f"s_sub_u32 s49, s48, {e['bias'](31)}")]
    for x in range(KAD,KAD+12): r.append(V("v_add_u32",x,"s49",x))
    r+=[V("v_mov_b32",ONE+k,"0x3f803f80") for k in range(4)]
    for p in range(2):
        r+=[salu(f"s_cmp_eq_u64 s[{sFLAG+2*p}:{sFLAG+2*p+1}], 0"), raw(f"s_cbranch_scc1 L_sk{p}")]
        r+=[valu(f"v_mbcnt_lo_u32_b32 v{l}, -1, 0",[l],[]), valu(f"v_mbcnt_hi_u32_b32 v{l}, -1, v{l}",[l],[l]), V("v_and_b32",l16,"15",l), V("v_lshrrev_b32",l,"4",l)]
        for j in range(8):
            r+=[V("v_add_u32",t0,str(4*j),l), V("v_and_b32",t1,"15",t0), V("v_xor_b32",t1,t1,l16), V("v_lshlrev_b32",t1,"4",t1), V("v_lshl_add_u32",VK+j,t0,"8",t1),
                V("v_and_b32",t1,"7",t0), V("v_lshlrev_b32",t1,"1",t1), V("v_xor_b32",t1,t1,l16), V("v_lshlrev_b32",t1,"4",t1), V("v_lshl_add_u32",VV+j,t0,"8",t1)]
        for s in range(8):
            d=QA+4*s; r.append(I(f"buffer_load_dwordx4 {vr(d,4)}, v{QO[p]}, s[{sQ[p]}:{sQ[p]+3}], 0 offen offset:{(s%2)*256+(s//2)*64}",'vld',R(d,4),[QO[p]]))
        for s in range(8): r+=e['qfix'](QA,s)
        for x in list(range(O,O+64))+R(LA[0],4)+R(LA[1],4): r.append(V("v_mov_b32",x,"0"))
        r+=[V("v_mov_b32",MO+i,"0xff800000") for i in range(2)]
        r+=[salu(f"s_mov_b32 s{sOFF}, {p*131072}")]+full()+[I(f"L_sl{p}:",'label')]
        for j in range(8):
            for base,vo,sr in ((0,VK,sK),(e['VB'],VV,sV)):
                r+=[salu(f"s_add_u32 m0, s48, {base+1024*j}"), I(f"buffer_load_dwordx4 v{vo+j}, s[{sr}:{sr+3}], s{sOFF} offen lds",'dma',[],[vo+j],tag=('S',p))]
        r+=full()
        r+=[e['kread'](0,s) for s in range(8)]
        for s in range(8):
            kt,ds=s//4,s%4
            for qb in range(2): dd=S0+8*qb+4*kt; r.append(mfma16(dd,FRB[s],QA+4*(2*ds+qb),None if ds==0 else dd))
        r+=[e['vread'](0,j,u2) for j in range(8) for u2 in range(2)]
        s=S0
        for k in (0,2,4,6): r+=[V("v_max3_f32",T+i,(MO+i if k==0 else T+i),s+8*i+k,s+8*i+k+1) for i in range(2)]
        r+=e['xred']("v_max_f32",[T,T+1],[T+2,T+3])
        for i in range(2):
            r+=[V("v_sub_f32",AL+i,MO+i,T+i), V("v_mul_f32",AL+i,f"s{sC}",AL+i), trans(f"v_exp_f32 v{AL+i}, v{AL+i}",[AL+i],[AL+i]), V("v_mov_b32",MO+i,T+i)]
        for x in range(64): r.append(V("v_mul_f32",O+x,O+x,AL+(x//4)%2))
        for i in range(2): r+=[V("v_mul_f32",LA[i]+k,LA[i]+k,AL+i) for k in range(4)]
        for x in range(16): r+=[V("v_sub_f32",s+x,s+x,MO+x//8)]
        for x in range(16): r+=[V("v_mul_f32",s+x,f"s{sC}",s+x)]
        for x in range(16): r+=[trans(f"v_exp_f32 v{s+x}, v{s+x}",[s+x],[s+x])]
        for k in range(8): r+=[V("v_cvt_pk_bf16_f32",P0+k,s+2*k,s+2*k+1)]
        r+=[mfma16(LA[qb],ONE,P0+4*qb,LA[qb]) for qb in range(2)]
        for j in range(8):
            for qb in range(2): dd=O+8*j+4*qb; r.append(mfma16(dd,e['vfb'](j),P0+4*qb,dd))
        r+=full()+[salu(f"s_add_u32 s{sOFF}, s{sOFF}, 8192"), salu(f"s_cmp_lt_u32 s{sOFF}, {(p+1)*131072}"), raw(f"s_cbranch_scc1 L_sl{p}")]
        r+=[trans(f"v_rcp_f32 v{RI[i]}, v{LA[i]}",[RI[i]],[LA[i]]) for i in range(2)]
        for d in range(4):
            r+=e['conv'](0,d,0)
            for gq in range(2):
                x=QA+8*d+4*gq
                r+=[e['perm'](16,x,x+2),e['perm'](16,x+1,x+3)]+[e['bperm'](x+k,e['IS']) for k in range(4)]+[I(f"buffer_store_dwordx4 {vr(x,4)}, v{QO[p]}, s[{sO[p]}:{sO[p]+3}], 0 offen offset:{d*64+256*gq}",'vst',[],R(x,4)+[QO[p]])]
        r+=full()+[I(f"L_sk{p}:",'label')]
    return r
```

```python
import sys, math, struct
from asmlib import *
NAME="standalone__mha_softmax__near_ridge"
def f2u(x): return struct.unpack('<I',struct.pack('<f',x))[0]
DEF=dict(nvpre=0, nkm=8, nfm=0, cpf=0, per=2, fint=1, nb0=0, qsplit=0, qbp=0, sbp=2, nr=10, dppst=0, qf0=12, shift=1, pv=3, pvord=0, hackst=0, bq0=1, nb=0, bqfirst=1, bqpos=0, lag=2, bq=0, lg0=1, dmam=0, nodma=0, nfr=16, dma_e=3, dma_en=4, dma_s=2, pm1=0, pm2=1, pswitch=8, sidetail=3, cvspill=0, pkcv=0, presc=0, msum=1, ps0=12, nt_dma=1, stpair=0, npre=4, maxdma=4, stamps=0, PD=6, BOFF=4, early=6, prio=0, qn0=7, qn1=15, st0=18, st1=30, nt_st=3, nt_ld=1, share=1, slow=1, force_slow=0, pkadd=0, dmaspread=1.0, m16=1, verbose=0, nosm=0, nold=0)
POL=['',' nt',' sc1',' sc0 sc1',' nt sc1',' sc0 nt sc1',' sc0 nt']
QORD=[0,2,1,3,4,6,5,7]
def gen(**kw):
    o=dict(DEF); o.update(kw); M16=o['m16']; G=2 if M16 else 1
    O=0; QA=64; QB=96; S=[128,144]; P=[160,168]; FR=176; NFR=8
    NKA=4 if M16 else 8; KAD=208; VAD=KAD+NKA; DK=220; DV=221; QO=[222,223]; MC=[224,225]; L=[[226,228],[252,254]]; LA=[226,252]; RI=[230,232]; T=234; CI=[244,248]; ONE=248; sC2=35
    sQ=[8,12]; sK=16; sV=20; sO=[24,28]; sC=32; sW=33; sOFF=34; sFLAG=36
    pre=[]; a=pre.append
    def V(op,d,*src):
        regs=[x for x in src if isinstance(x,int)]
        return valu(f"{op} v{d}, "+", ".join(f"v{x}" if isinstance(x,int) else x for x in src),[d],regs)
    a(raw("s_cmp_ge_u32 s2, 256")); a(raw("s_cbranch_scc1 L_end"))
    a(raw("s_load_dwordx4 s[40:43], s[0:1], 0")); a(raw("s_load_dwordx4 s[44:47], s[0:1], 16")); a(raw(f"s_load_dwordx2 s[4:5], s[0:1], {32 if o['stamps']==3 else 40}"))
    stl=[]
    def stamp():
        n=len(stl); stl.append(n); r=50+4*n; assert r+4<=102
        return [raw(f"s_memtime s[{r}:{r+1}]"),raw(f"s_memrealtime s[{r+2}:{r+3}]")]
    if o['stamps']: pre+=stamp()
    l=128; wv=129; h=130; l16=131; l32=132; t0=133; t1=134; q4=135; t2=136; g4=137; pg=138
    a(V("v_and_b32",l,"63",0)); a(V("v_lshrrev_b32",wv,"6",0)); a(raw("s_nop 0"))
    a(I(f"v_readfirstlane_b32 s{sW}, v{wv}",'rfl',[],[wv]))
    if o['share']:
        a(salu("s_and_b32 s3, s2, 7")); a(salu("s_lshr_b32 s6, s2, 4")); a(salu("s_lshl_b32 s3, s3, 4")); a(salu("s_add_u32 s3, s3, s6"))
        a(salu("s_lshr_b32 s7, s2, 3")); a(salu("s_and_b32 s7, s7, 1"))
    else:
        a(salu("s_lshr_b32 s3, s2, 1")); a(salu("s_and_b32 s7, s2, 1"))
    a(V("v_lshrrev_b32",h,"5",l)); a(V("v_and_b32",l16,"15",l)); a(V("v_and_b32",l32,"31",l)); a(V("v_lshrrev_b32",g4,"4",l))
    a(V("v_lshrrev_b32",t0,"4",0)); a(V("v_and_b32",t1,"15",t0)); a(V("v_xor_b32",t1,t1,l16)); a(V("v_lshlrev_b32",t1,"4",t1)); a(V("v_lshl_add_u32",DK,t0,"8",t1))
    if M16: a(V("v_and_b32",t1,"7",t0)); a(V("v_lshlrev_b32",t1,"1",t1))
    else: a(V("v_and_b32",t1,"3",t0)); a(V("v_lshlrev_b32",t1,"2",t1))
    a(V("v_xor_b32",t1,t1,l16)); a(V("v_lshlrev_b32",t1,"4",t1)); a(V("v_lshl_add_u32",DV,t0,"8",t1))
    if M16:
        a(V("v_and_b32",pg,"1",g4)); a(V("v_lshl_add_u32",pg,pg,"1",h))
        a(V("v_lshrrev_b32",t0,"2",0)); a(V("v_lshlrev_b32",t0,"9",t0)); a(V("v_and_b32",t1,"3",l)); a(V("v_lshl_add_u32",t0,t1,"4",t0))
        a(V("v_lshl_add_u32",240,l16,"2",pg)); a(V("v_lshlrev_b32",240,"2",240))
        a(V("v_and_b32",t2,"1",l)); a(V("v_lshlrev_b32",t2,"7",t2)); a(V("v_and_b32",t1,"2",l)); a(V("v_lshl_add_u32",t2,t1,"5",t2)); a(V("v_and_b32",t1,"60",l)); a(V("v_add_u32",241,t2,t1))
    else:
        a(V("v_lshlrev_b32",t0,"5",wv)); a(V("v_add_u32",t0,t0,l32)); a(V("v_lshlrev_b32",t0,"8",t0)); a(V("v_lshl_add_u32",t0,h,"4",t0))
    a(salu("s_lshl_b32 s6, s7, 16")); a(V("v_add_u32",QO[0],"s6",t0)); a(salu("s_xor_b32 s6, s6, 0x10000")); a(V("v_add_u32",QO[1],"s6",t0))
    a(V("v_lshlrev_b32",t0,"4",wv)); a(V("v_add_u32",t0,t0,l16)); a(V("v_lshlrev_b32",t0,"9",t0)); a(V("v_lshl_add_u32",t0,pg,"4",t0))
    a(V("v_add_u32",243,"s6",t0)); a(V("v_xor_b32",242,"0x10000",243)); QD=[242,243]
    a(raw("s_waitcnt lgkmcnt(0)"))
    if o['stamps']==2: pre+=stamp()
    a(salu("s_mul_i32 s6, s3, 0x40000"))
    for sr,p in ((sK,42),(sV,44)):
        a(salu(f"s_add_u32 s{sr}, s{p}, s6")); a(salu(f"s_addc_u32 s{sr+1}, s{p+1}, 0")); a(salu(f"s_mov_b32 s{sr+2}, 0x40000")); a(salu(f"s_mov_b32 s{sr+3}, 0x20000"))
    a(salu(f"s_lshl_b32 s{sW}, s{sW}, 10"))
    a(salu(f"s_cmp_ge_u32 s{sW}, 4096")); a(raw("s_cselect_b64 vcc, -1, 0"))
    nlab=[0]
    def only(grp,lst):
        if not lst: return []
        nlab[0]+=1; lb=f"L_g{nlab[0]}"
        for x in lst: x.g=grp
        return [raw(f"s_cbranch_vcc{'nz' if grp=='A' else 'z'} {lb}")]+lst+[I(lb+":",'label')]
    LAG=o['lag']; NR=o['nr']; VB=NR*8192; HB=(NR//2)*8192; SO=[240,241]
    nt=POL[o['nt_ld']]
    a(salu(f"s_cselect_b32 s48, {LAG*8192}, 0")); a(salu(f"s_cselect_b32 s49, {VB}, 0")); a(salu(f"s_add_u32 s35, s{sW}, s48")); a(salu("s_sub_u32 s49, s35, s49"))
    def dma2(kind,U):
        if not LAG: return dma(kind,U)
        if not o['shift']: return only('A',dma(kind,U)+dma(kind,U,4096))
        if U+LAG>=32: return only('A',dma(kind,U))
        r=dma(kind,U); r[2].tagB=(kind,U+LAG)
        return [salu(f"s_add_u32 m0, s{35 if U%NR+LAG<NR else 49}, {(0 if kind=='K' else VB)+(U%NR)*8192}"), salu(f"s_add_u32 s{sOFF}, s48, {U*8192}"), r[2]]
    def dma(kind,U,ex=0):
        base=(0 if kind=='K' else VB)+(U%NR)*8192+ex; sr=sK if kind=='K' else sV
        return [salu(f"s_add_u32 m0, s{sW}, {base}"), salu(f"s_mov_b32 s{sOFF}, {U*8192+ex}"),
                I(f"buffer_load_dwordx4 v{DK if kind=='K' else DV}, s[{sr}:{sr+3}], s{sOFF} offen{POL[o['nt_dma']]} lds",'dma',[],[DK,DV],tag=(kind,U))]
    if o['cpf']:
        pf=[raw("s_getpc_b64 s[6:7]"), V("v_and_b32",T,"255",0), V("v_lshlrev_b32",T,"7",T), V("v_mov_b32",T+1,"s7"),
            valu(f"v_add_co_u32 v{T}, s[98:99], s6, v{T}",[T],[T]), raw("s_nop 1"), valu(f"v_addc_co_u32 v{T+1}, s[98:99], v{T+1}, 0, s[98:99]",[T+1],[T+1]),
            I(f"global_load_dword v{T+2}, v[{T}:{T+1}], off",'vld',[T+2],[T,T+1])]
        pre+=only('B',pf)
    pre+=dma('K',0)+dma('K',1)
    if o['stamps']==2: pre+=stamp()
    a(salu("s_mul_i32 s6, s3, 253952"))
    for srs,p in ((sQ,40),(sO,46)):
        a(salu(f"s_add_u32 s{srs[0]}, s{p}, s6")); a(salu(f"s_addc_u32 s{srs[0]+1}, s{p+1}, 0")); a(salu(f"s_mov_b32 s{srs[0]+2}, 126976")); a(salu(f"s_mov_b32 s{srs[0]+3}, 0x20000"))
        a(salu(f"s_add_u32 s{srs[1]}, s{srs[0]}, 126976")); a(salu(f"s_addc_u32 s{srs[1]+1}, s{srs[0]+1}, 0")); a(salu(f"s_mov_b32 s{srs[1]+2}, 126976")); a(salu(f"s_mov_b32 s{srs[1]+3}, 0x20000"))
    def bperm(x,idx): return I(f"ds_bpermute_b32 v{x}, v{idx}, v{x}",'ds',[x],[x,idx])
    def qfix(X,s): return [bperm(X+4*s+k,240) for k in range(4)]
    def qload(p,s):
        d=(QA,QB)[p]+4*s; off=(s%2)*256+(s//2)*64 if M16 else s*32
        qo=(QO if o['qbp']>>p&1 else QD)[p]
        return I(f"buffer_load_dwordx4 {vr(d,4)}, v{qo}, s[{sQ[p]}:{sQ[p]+3}], 0 offen offset:{off}{nt}",'vld',R(d,4),[qo])
    pre+=only('A',[qload(0,s) for s in QORD]) if LAG and o['bq0']!=2 else [qload(0,s) for s in QORD]
    if o['stamps']==2: pre+=stamp()
    issued={('K',0),('K',1)}
    order=[(kd,u) for U in range(2,9) for kd,u in (('V',U-2),('K',U)) if u<8]
    for kd,u in order[:o['npre']]: pre+=dma(kd,u); issued.add((kd,u))
    if LAG and o['bq0']==1: pre+=only('B',[qload(0,s) for s in QORD])
    bl=[]
    for kd,u in order[o['npre']:o['npre']+o['nb0']]: bl+=dma(kd,u)+dma(kd,u,-4096); issued.add((kd,u))
    pre+=only('B',bl); bl=[]
    for kd,u in order[o['npre']+o['nb0']:o['npre']+o['nb0']+o['nb']]: bl+=dma(kd,u)+dma(kd,u,-4096); issued.add((kd,u))
    if o['stamps']==2:
        pre+=stamp(); a(I("s_nop 0",'other',wait={('K',0)})); pre+=stamp(); a(I("s_nop 0",'other',u=[QA])); pre+=stamp(); a(I("s_nop 0",'other',u=[QA+28])); pre+=stamp()
    a(V("v_lshrrev_b32",q4,"2",l16))
    if M16:
        for s in range(4):
            a(V("v_add_u32",t0,str(4*s),pg)); a(V("v_xor_b32",t0,t0,l16)); a(V("v_lshlrev_b32",t0,"4",t0)); a(V("v_lshl_add_u32",KAD+s,l16,"8",t0))
        a(V("v_lshrrev_b32",t1,"2",l))
        a(V("v_lshlrev_b32",t0,"8",t1)); a(V("v_and_b32",t2,"3",l)); a(V("v_lshl_add_u32",t0,t2,"3",t0)); a(V("v_add_u32",t0,str(VB),t0))
        a(V("v_and_b32",t1,"7",t1))
        for d in range(8): a(V("v_xor_b32",t2,str(d),t1)); a(V("v_lshl_add_u32",VAD+d,t2,"5",t0))
    else:
        for s in range(8):
            a(V("v_add_u32",t0,str(2*s),h)); a(V("v_xor_b32",t0,t0,l16)); a(V("v_lshlrev_b32",t0,"4",t0)); a(V("v_lshl_add_u32",KAD+s,l32,"8",t0))
        a(V("v_lshl_add_u32",t0,h,"2",q4)); a(V("v_lshlrev_b32",t0,"8",t0)); a(V("v_and_b32",t1,"16",l)); a(V("v_lshl_add_u32",t0,t1,"1",t0))
        a(V("v_and_b32",t1,"1",l)); a(V("v_lshl_add_u32",t0,t1,"4",t0)); a(V("v_and_b32",t1,"2",l)); a(V("v_lshl_add_u32",t0,t1,"2",t0))
        a(V("v_add_u32",t0,"0x10000",t0))
        for d in range(4): a(V("v_xor_b32",t2,str(d),q4)); a(V("v_lshl_add_u32",VAD+d,t2,"6",t0))
    c=(128**-0.5)*math.log2(math.e)
    a(salu(f"s_mov_b32 s{sC}, 0x{f2u(c):08x}"))
    chi=f2u(c)>>16; clo=f2u(c-struct.unpack('<f',struct.pack('<I',chi<<16))[0]); clo=(clo+0x8000)>>16
    def presc(p,s):
        r=[]
        for k in range(4):
            x=(QA,QB)[p]+4*s+k; t=T+2*(k%2)
            if o['presc']==1:
                r+=[I(f"v_dot2_f32_bf16 v{t}, v{x}, s{sC2}, 0 op_sel:[0,0,0] op_sel_hi:[0,1,0]",'dot',[t],[x]), I(f"v_dot2_f32_bf16 v{t+1}, v{x}, s{sC2}, 0 op_sel:[1,0,0] op_sel_hi:[1,1,0]",'dot',[t+1],[x])]
            elif p==0:
                r+=[V("v_lshlrev_b32",t,"16",x),V("v_and_b32",t+1,"0xffff0000",x),valu(f"v_pk_mul_f32 {vr(t,2)}, {vr(t,2)}, s[{sC}:{sC+1}] op_sel_hi:[1,0]",[t,t+1],[t,t+1])]
            else:
                r+=[V("v_lshlrev_b32",t,"16",x),V("v_and_b32",t+1,"0xffff0000",x),V("v_mul_f32",t,f"s{sC}",t),V("v_mul_f32",t+1,f"s{sC}",t+1)]
            if k>0: r.append(V("v_cvt_pk_bf16_f32",x-1,T+2*((k-1)%2),T+2*((k-1)%2)+1))
        r.append(V("v_cvt_pk_bf16_f32",(QA,QB)[p]+4*s+3,T+2,T+3))
        return r
    if o['msum']:
        for k in range(4): a(V("v_mov_b32",ONE+k,"0x3f803f80"))
    else:
        for p in range(2):
            for x in L[p]: a(V("v_mov_b32",x,"0")); a(V("v_mov_b32",x+1,"0"))

    if o['prio']:
        a(salu(f"s_cmp_ge_u32 s{sW}, 4096")); a(raw("s_cbranch_scc0 L_prio")); a(raw("s_setprio 1")); a(I("L_prio:",'label'))
    NU=32; NFR=o['nfr']; FRB=[FR+4*k for k in range(8)]+[144,148,152,156,168,172,244,234]; S0=S[0]; P0=P[0]
    def perm(n,x,y): return I(f"v_permlane{n}_swap_b32 v{x}, v{y}",'perm',[x,y],[x,y])
    def xred(op,regs,tmps):
        r=[]
        for n in (16,32): r+=[V("v_mov_b32",t,x) for x,t in zip(regs,tmps)]+[perm(n,x,t) for x,t in zip(regs,tmps)]+[V(op,x,x,t) for x,t in zip(regs,tmps)]
        return r
    def bias(U): return HB if (NR>8 and U%NR>=NR//2) else 0
    def rebias(regs,U):
        d=bias(U)-bias(U-1) if U>0 else 0
        return [V("v_add_u32" if d>0 else "v_subrev_u32",x,str(abs(d)),x) for x in regs] if d else []
    def kread(U,s): ad=KAD+s%4; fb=FRB[s]; return I(f"ds_read_b128 {vr(fb,4)}, v{ad} offset:{(U%NR)*8192-bias(U)+(s//4)*4096}",'ds',R(fb,4),[ad])
    def vfb(j): return FRB[(8+j)%NFR]
    def vread(U,j,u2): fb=vfb(j)+2*u2; return I(f"ds_read_b64_tr_b16 {vr(fb,2)}, v{VAD+j} offset:{(U%NR)*8192-bias(U)+u2*4096}",'ds',R(fb,2),[VAD+j])
    bs=[U for U in range(-1,NU-1) if U<o['early'] or (U-o['early'])%o['per']==o['per']-1]
    def nvp(X): return o['nvpre'] if 3<=X<NU-1 else 0
    def nkm(X): return o['nkm'] if 3<=X<NU else 0
    def bwait(U):
        nx=[x for x in bs if x>U]; U2=nx[0] if nx else NU
        return {('K',x) for x in range(U+2 if U>=0 else 0,min(U2+2,NU))}|{('V',x) for x in range(NU) if U<=(x-1 if nvp(x) else x)<U2}
    def cbar(U,grp):
        if grp=='B': U+=LAG
        return only(grp,[I("s_barrier",'other',wait=bwait(U))]) if U in bs else []
    extra={U:[] for U in range(-1,NU+1)}
    mextra={U:[] for U in range(-1,NU+2)}
    vextra={U:[] for U in range(-1,NU+1)}
    preiss=set(issued); mainiss=[]
    for U in range(0,NU):
        b=max(x for x in bs if x<=U-1)
        todo=sorted([(X-1 if kd=='K' else X+0.5,kd,X) for X in range(NU) for kd in 'KV' if (kd,X) not in issued and X-NR<=max((b if kd=='K' else b-1)-LAG,-1)])
        for _,kd,X in todo[:(o['dma_e'] if U<o['dma_en'] else o['dma_s'])]: issued.add((kd,X)); mainiss.append((kd,X,U)); (mextra if o['dmam'] else extra)[U+o['dmam']].append(dma2(kd,X) if not (o['nodma'] and X>=8) else [I("s_nop 0",'dma',tag=(kd,X))])
    assert len(issued)==2*NU
    if LAG and o['shift']:
        Bhave=set(preiss)|{(kd,X+LAG) for kd,X,U in mainiss}
        for kd,X in sorted([(kd,X) for kd in 'KV' for X in range(NU) if (kd,X) not in Bhave],key=lambda z:z[1]-1 if z[0]=='K' else z[1]+0.5): assert X<NR; bl+=dma(kd,X)
        for kd,X,U in mainiss:
            b2=max(x for x in bs if x<=U+LAG); assert X+LAG-NR<=max((b2 if kd=='K' else b2-1)-LAG,-1),(kd,X,U)
    for j in range(4): extra[o['qn0']+(o['qn1']-o['qn0'])*j//4].append([qload(1,QORD[2*j]),qload(1,QORD[2*j+1])])
    for j,s in enumerate(QORD if o['qbp']&2 else []): extra[o['qf0']+(16-o['qf0'])*j//8].append(qfix(QB,s))
    if o['presc']:
        for j,s in enumerate(QORD): vextra[o['ps0']+(16-o['ps0'])*j//8]+=presc(1,s)
    nts=POL[o['nt_st']]
    def fin(p):
        l0,l1=LA if o['msum'] else L[p]
        thr=V("v_mov_b32",231,f"0x{f2u(2.0**(-1 if o['force_slow'] else 30)):08x}")
        r=[] if o['msum'] else xred("v_add_f32",[l0,l1],[T+2,T+3])
        return r+[trans(f"v_rcp_f32 v{RI[0]}, v{l0}",[RI[0]],[l0]),trans(f"v_rcp_f32 v{RI[1]}, v{l1}",[RI[1]],[l1]),thr,V("v_add_f32",233,l0,l1),V("v_add_f32",233,233,RI[0]),V("v_add_f32",233,233,RI[1]),
                  valu(f"v_cmp_nlt_f32 s[{sFLAG+2*p}:{sFLAG+2*p+1}], v{233}, v{231}",[],[233,231])]
    def conv(p,d,pk):
        X=(QA,QB)[p]; cv=[]; pend=None
        for k in range(8):
            r=O+16*d+2*k; qb=(k//2)%2; ri=RI[qb]; x=X+8*d+4*qb+2*(k//4)+k%2
            if pk: cv.append(valu(f"v_pk_mul_f32 {vr(r,2)}, {vr(r,2)}, {vr(ri,2)} op_sel_hi:[1,0]",[r,r+1],[r,r+1,ri]))
            else: cv+=[V("v_mul_f32",r,r,ri),V("v_mul_f32",r+1,r+1,ri)]
            if pend: cv.append(pend)
            pend=V("v_cvt_pk_bf16_f32",x,r,r+1)
        return cv+[pend]
    def store(p,d,g):
        x=(QA,QB)[p]+8*d+4*g
        if o['hackst']: return [V("v_and_b32",T,"0xffffe000",QO[p]),valu(f"v_mbcnt_lo_u32_b32 v{T+1}, -1, 0",[T+1],[]),valu(f"v_mbcnt_hi_u32_b32 v{T+1}, -1, v{T+1}",[T+1],[T+1]),V("v_lshl_add_u32",T,T+1,"4",T),V("v_add_u32",T,str((2*d+g)*1024),T),
            I(f"buffer_store_dwordx4 {vr(x,4)}, v{T}, s[{sO[p]}:{sO[p]+3}], 0 offen{nts}",'vst',[],R(x,4)+[T],tag=('O',p))]
        return [perm(16,x,x+2),perm(16,x+1,x+3)]+[bperm(x+k,241) for k in range(4 if o['sbp']>>p&1 else 0)]+[I(f"buffer_store_dwordx4 {vr(x,4)}, v{(QO if o['sbp']>>p&1 else QD)[p]}, s[{sO[p]}:{sO[p]+3}], 0 offen offset:{d*64+256*g}{nts}",'vst',[],R(x,4)+[QO[p],QD[p]],tag=('O',p))]
    def store2(p,e,qb,X=None,pol=None):
        X=(QA,QB)[p] if X is None else X; A=X+16*e+4*qb; B=A+8; pol=nts if pol is None else pol
        r=[perm(16,A,A+2),perm(16,A+1,A+3),perm(16,B,B+2),perm(16,B+1,B+3)]+[V("v_mov_b32",T+k,B+k) for k in range(4)]
        r+=[I(f"v_mov_b32_dpp v{B+k}, v{A+k} row_shl:4 row_mask:0xf bank_mask:0x5",'perm',[B+k],[A+k,B+k]) for k in range(4)]
        r+=[I(f"v_mov_b32_dpp v{A+k}, v{T+k} row_shr:4 row_mask:0xf bank_mask:0xa",'perm',[A+k],[T+k,A+k]) for k in range(4)]
        st=[I(f"buffer_store_dwordx4 {vr(x,4)}, v{SO[p]}, s[{sO[p]}:{sO[p]+3}], 0 offen offset:{128*e+256*qb+2048*i}{pol}",'vst',[],R(x,4)+[SO[p]],tag=('O',p)) for i,x in ((1,B),(0,A))]
        return r,st
    for j in range(4 if o['dppst'] else 0):
        r,st=store2(0,j//2,j%2); w=o['st1']-o['st0']
        vextra[o['st0']+w*(2*j)//8]+=r+st[:1]; vextra[o['st0']+w*(2*j+1)//8]+=st[1:]
    for j in range(0 if o['dppst'] else 8):
        if o['stpair']: vextra[o['st0']+(o['st1']-o['st0'])*(j//2)//4]+=store(0,(j//4)*2+j%2,(j//2)%2)
        else:
            z=store(0,(j//4)*2+j%2,(j//2)%2); u=o['st0']+(o['st1']-o['st0'])*j//8; vextra[u]+=z[:-1]; extra[u+1].append(z[-1:])
    body=[I("s_barrier",'other',wait=bwait(-1))]+[kread(0,s) for s in range(8)]
    if LAG:
        qb_=[] if o['bq0'] else [qload(0,s) for s in QORD]
        for U in range(-LAG,0):
            if o['qsplit']:
                if U+LAG==0: body+=only('B',qb_[:o['qsplit']])
                if U+LAG==1: body+=only('B',qb_[o['qsplit']:]+bl if o['bqfirst'] else bl+qb_[o['qsplit']:])
            elif U+LAG==o['bqpos']: body+=only('B',qb_+bl if o['bqfirst'] else bl+qb_)
            if U<-1: body+=cbar(U,'B')
        if not (o['qbp']&1 or o['presc']): body+=cbar(-1,'B')
        if o['bq0']!=2 or bl: body+=only('A',[I("s_nop 0",'other',u=R(QA,32))])+only('B',[I("s_nop 0",'other',u=R(QA,32))])
    if o['presc']:
        assert not o['msum'] and not o['qbp']
        for s in QORD: body+=presc(0,s)
        if LAG: body+=cbar(-1,'B')
    if o['qbp']&1:
        for s in QORD: body+=qfix(QA,s)
        if LAG: body+=cbar(-1,'B')
    fpend=[]
    def fmx(k): return [valu(f"v_fma_f32 v{r}, v{r}, s{sC}, -v{MC[k//4]}",[r],[r,MC[k//4]]) for r in (S0+2*k,S0+2*k+1)]
    for U in range(NU+1):
        if o['stamps']==4:
            if U in (22,23,24): body+=stamp()
        elif o['stamps'] and U in ([0,1,5,9,13,17,21,25,29,32] if o['stamps']==1 else [0,1,5] if o['stamps']==2 else [0,1,9,17,25,32]): body+=stamp()
        body.append(I(f"s_setprio {o['pm1']}",'other',wait={'LGALL'} if o['lg0'] else None))
        ms=[]; rd=[vread(U-1,j,u2) if j>=nvp(U-1) else None for j in range(8) for u2 in range(2)] if U>=1 else []
        npre_v=0
        if U<NU:
            q=(QA,QB)[U//16]
            for s in range(8):
                kt,ds=s//4,s%4
                for qb in range(2): dd=S0+8*qb+4*kt; ms.append(mfma16(dd,FRB[s],q+4*(2*ds+qb),(CI[qb] if o['presc'] and U%16>=1 else None) if ds==0 else dd))
        else: rd=[]
        mx=[]
        if U==17 and o['cvspill']: mx=conv(0,3,0)
        for i,m in enumerate(ms):
            body.append(m)
            if i==o['pswitch']: body.append(raw(f"s_setprio {o['pm2']}"))
            if rd and rd[i]: body.append(rd[i])
            if mx: body+=mx[i*len(mx)//16:(i+1)*len(mx)//16]
        if U>=1:
            first=(U-1)%16==0
            if o['msum']: body+=[mfma16(LA[qb],ONE,P0+4*qb,None if first else LA[qb]) for qb in range(2)]
            if o['pvord']:
                for qb in range(2):
                    for j in range(8): dd=O+8*j+4*qb; body.append(mfma16(dd,vfb(j),P0+4*qb,None if first else dd))
            for j in range(0 if o['pvord'] else 8):
                for qb in range(2): dd=O+8*j+4*qb; body.append(mfma16(dd,vfb(j),P0+4*qb,None if first else dd))
                jj=j if NFR==16 else j+1
                if U+1<NU and 8-nkm(U+1)<=jj<8: body.append(kread(U+1,jj))
                if U<NU and U%16 and j<o['nfm']:
                    f2=fmx(j); body.insert(len(body)-(2 if body[-1].k=='ds' else 1),f2[0]); body.append(f2[1])
                if j%2==1 and j//2<len(mextra[U]): body+=mextra[U][j//2]
                if U==NU and o['fint']:
                    if j==1: body+=fin(1)
                    if j in (3,5,7):
                        d=(j-3)//2; z0,z1=store(1,d,0),store(1,d,1); body+=conv(1,d,1)+fpend+z0[:-1]+z1[:-1]; fpend=z0[-1:]+z1[-1:]
        body.append(raw(f"s_setprio {o['pv']}"))
        if o['stamps']==4 and U in (22,23): body+=stamp()
        body+=cbar(U,'B')
        if o['stamps']==4 and U in (22,23): body+=stamp()
        if U==NU: break
        s=S0; p=U//16; lst=(rebias(R(KAD,4),U+1) if U+1<NU and not o['nkm'] else [])+rebias(R(VAD,8),U)
        if U%16==0:
            for k in (0,3,5): lst+=[V("v_max3_f32",P0+i,*( [s+8*i,s+8*i+1,s+8*i+2] if k==0 else [P0+i,s+8*i+k,s+8*i+k+1])) for i in range(2)]
            lst+=[V("v_max_f32",P0+i,P0+i,s+8*i+7) for i in range(2)]+xred("v_max_f32",[P0,P0+1],[P0+2,P0+3])
            lst+=[V("v_sub_f32",CI[i]+k,"0",P0+i) for k in range(4) for i in range(2)] if o['presc'] else [V("v_mul_f32",MC[i],f"s{sC}",P0+i) for i in range(2)]
        def fm(k):
            if U%16 and k<o['nfm']: return []
            if o['presc']: return [V("v_add_f32",r,r,CI[k//4]) for r in (s+2*k,s+2*k+1)] if U%16==0 else []
            return [valu(f"v_fma_f32 v{r}, v{r}, s{sC}, -v{MC[k//4]}",[r],[r,MC[k//4]]) for r in (s+2*k,s+2*k+1)]
        def ex(r): return [trans(f"v_exp_f32 v{r}, v{r}",[r],[r])]
        def ad(k): la=L[p][k//4]; return [] if o['msum'] else [V("v_add_f32",la,la,s+2*k),V("v_add_f32",la+1,la+1,s+2*k+1)]
        def cvt(k): return [V("v_cvt_pk_bf16_f32",P0+k,s+2*k,s+2*k+1)]
        units=[fm(0)]
        for k in range(8):
            units+=[ex(s+2*k), fm(k+1) if k<7 else [], ex(s+2*k+1)]
            if k>0: units.append(ad(k-1))
            if k%2==0 and k>0: units.append(cvt(k-2)+cvt(k-1))
        units+=[ad(7),cvt(6)+cvt(7)]
        units=[u for u in units if u]
        side=([[kread(U+1,k)] for k in range(8-nkm(U+1))]+[[vread(U,j,u2)] for j in range(nvp(U)) for u2 in range(2)] if U+1<NU else [[vread(U,j,u2)] for j in range(8) for u2 in range(2)])
        ex_=extra[U]; sidem=[]
        for k in range(max(len(side),len(ex_))):
            if k<len(ex_): sidem.append(ex_[k])
            if k<len(side): sidem.append(side[k])
        nu=len(units)-o['sidetail']
        for k,u in enumerate(units):
            lst+=u
            if k<nu:
                for z in sidem[k*len(sidem)//nu:(k+1)*len(sidem)//nu]: lst+=z
        if U%16==15 and not o['msum']: lst+=[V("v_add_f32",x,x,x+1) for x in L[p]]+fin(p)
        if U==16:
            pr=fin(0) if o['msum'] else []
            for d in range(3 if o['cvspill'] else 4): pr+=conv(0,d,o['pkcv'])
            lst=lst+pr
        body+=lst+vextra[U]+(rebias(R(KAD,4),U+2) if U+2<NU and o['nkm'] else [])
        if o['stamps']==4 and U in (22,23): body+=stamp()
        body+=cbar(U,'A')
    if o['msum'] and not o['fint']: body+=fin(1)
    if o['dppst']:
        for e in range(2):
            body+=conv(1,2*e,1)+conv(1,2*e+1,1)
            for qb in range(2): r,st=store2(1,e,qb); body+=r+st
    elif o['stpair']:
        for d in (0,2): body+=conv(1,d,1)+conv(1,d+1,1)+store(1,d,0)+store(1,d+1,0)+store(1,d,1)+store(1,d+1,1)
    else:
        pend=fpend
        for d in range(3 if o['fint'] else 0,4):
            z0,z1=store(1,d,0),store(1,d,1); body+=conv(1,d,1)+pend+z0[:-1]+z1[:-1]; pend=z0[-1:]+z1[-1:]
        body+=pend
    post=[]
    if o['stamps']==3:
        post+=stamp(); post.append(I("s_nop 0",'other',wait={'VMALL'})); post+=stamp()
        post+=[raw("s_waitcnt lgkmcnt(0)"), salu(f"s_add_u32 s3, s2, s{sW}"), salu("s_cmp_lg_u32 s3, 133"), raw("s_cbranch_scc1 L_end"),
               salu("s_mov_b32 s8, s4"),salu("s_mov_b32 s9, s5"),salu("s_mov_b32 s10, 256"),salu("s_mov_b32 s11, 0x20000"), V("v_mov_b32",T,"0"), raw("s_mov_b64 exec, 1")]
        for j in range(1,len(stl)):
            post+=[salu(f"s_sub_u32 s3, s{50+4*j}, s50"),salu(f"s_sub_u32 s6, s{52+4*j}, s52"),V("v_mov_b32",T+2,"s3"),V("v_mov_b32",T+3,"s6"),
                   I(f"buffer_store_dwordx2 {vr(T+2,2)}, v{T}, s[8:11], 0 offen offset:{8*(j-1)}",'vst',[],[T,T+2,T+3])]
    elif o['stamps']:
        post+=stamp(); post.append(I("s_nop 0",'other',wait={'VMALL'})); post+=stamp()
        post+= [raw("s_waitcnt lgkmcnt(0)"), salu("s_mov_b32 s8, s4"),salu("s_mov_b32 s9, s5"),salu("s_mov_b32 s10, 0x100000"),salu("s_mov_b32 s11, 0x20000"),
                salu("s_lshl_b32 s3, s2, 11"), salu(f"s_lshr_b32 s6, s{sW}, 2"), salu("s_add_u32 s3, s3, s6"), V("v_mov_b32",T,"s3"), raw("s_mov_b64 exec, 1")]
        for j in range(2*len(stl)):
            post+=[V("v_mov_b32",T+2,f"s{50+2*j}"),V("v_mov_b32",T+3,f"s{51+2*j}"), I(f"buffer_store_dwordx2 {vr(T+2,2)}, v{T}, s[8:11], 0 offen offset:{8*j}",'vst',[],[T,T+2,T+3])]
        post.append(raw("s_mov_b64 exec, -1"))
    slow=[]
    if o['slow'] and not o['stamps']:
        from slowpath import slowpath
        slow=slowpath(locals())
    ins=insert_waits(pre+body+post+slow)
    ins,nn=fix_hazards(ins,verbose=o['verbose'])
    txt=[x.t if x.k=='label' else "    "+x.t for x in ins if x.t]
    hdr=open('cdna_kernels/%s.s.ref'%NAME).read().split('; Override')[0]
    out=hdr+f"; @launch grid=(256,1,1) block=(512,1,1) lds={2*VB}\n.amdgcn_target \"amdgcn-amd-amdhsa--gfx950\"\n.text\n.globl {NAME}_kernel\n.p2align 8\n.type {NAME}_kernel,@function\n{NAME}_kernel:\n"
    out+="\n".join(txt)+"\nL_end:\n    s_endpgm\n"
    out+=f""".section .rodata,"a"
.p2align 6
.amdhsa_kernel {NAME}_kernel
  .amdhsa_next_free_vgpr 256
  .amdhsa_next_free_sgpr 102
  .amdhsa_accum_offset 256
  .amdhsa_group_segment_fixed_size 0
  .amdhsa_kernarg_size 48
  .amdhsa_user_sgpr_count 2
  .amdhsa_user_sgpr_kernarg_segment_ptr 1
  .amdhsa_system_sgpr_workgroup_id_x 1
.end_amdhsa_kernel
"""
    return out,len(ins),nn
if __name__=="__main__":
    path=sys.argv[1]; kw={}
    for s in sys.argv[2:]:
        k,v=s.split('='); kw[k]=float(v) if '.' in v else int(v)
    out,n,nn=gen(**kw); open(path,'w').write(out); print(path,"insts",n,"nops",nn)
```

```python
import sys, math, struct
from asmlib import *
NAME="standalone__mha_softmax__near_ridge"
def f2u(x): return struct.unpack('<I',struct.pack('<f',x))[0]
DEF=dict(dsum=0, nvpre=0, nkm=8, nfm=0, cpf=0, per=2, fint=1, nb0=0, qsplit=0, qbp=0, sbp=2, nr=10, dppst=0, qf0=12, shift=1, pv=3, pvord=0, hackst=0, bq0=1, nb=0, bqfirst=1, bqpos=0, lag=2, bq=0, lg0=1, dmam=0, nodma=0, nfr=16, dma_e=3, dma_en=4, dma_s=2, pm1=0, pm2=1, pswitch=8, sidetail=3, cvspill=0, pkcv=0, presc=0, msum=1, ps0=12, nt_dma=1, stpair=0, npre=4, maxdma=4, stamps=0, PD=6, BOFF=4, early=6, prio=0, qn0=7, qn1=15, st0=18, st1=30, nt_st=3, nt_ld=1, share=1, slow=1, force_slow=0, pkadd=0, dmaspread=1.0, m16=1, verbose=0, nosm=0, nold=0)
POL=['',' nt',' sc1',' sc0 sc1',' nt sc1',' sc0 nt sc1',' sc0 nt']
QORD=[0,2,1,3,4,6,5,7]
def gen(**kw):
    o=dict(DEF); o.update(kw); M16=o['m16']; G=2 if M16 else 1
    O=0; QA=64; QB=96; S=[128,144]; P=[160,168]; FR=176; NFR=8
    NKA=4 if M16 else 8; KAD=208; VAD=KAD+NKA; DK=220; DV=221; QO=[222,223]; MC=[224,225]; L=[[226,228],[252,254]]; LA=[226,252]; RI=[230,232]; T=234; CI=[244,248]; ONE=248; sC2=35
    sQ=[8,12]; sK=16; sV=20; sO=[24,28]; sC=32; sW=33; sOFF=34; sFLAG=36
    pre=[]; a=pre.append
    def V(op,d,*src):
        regs=[x for x in src if isinstance(x,int)]
        return valu(f"{op} v{d}, "+", ".join(f"v{x}" if isinstance(x,int) else x for x in src),[d],regs)
    a(raw("s_cmp_ge_u32 s2, 256")); a(raw("s_cbranch_scc1 L_end"))
    a(raw("s_load_dwordx4 s[40:43], s[0:1], 0")); a(raw("s_load_dwordx4 s[44:47], s[0:1], 16")); a(raw(f"s_load_dwordx2 s[4:5], s[0:1], {32 if o['stamps']==3 else 40}"))
    stl=[]
    def stamp():
        n=len(stl); stl.append(n); r=50+4*n; assert r+4<=102
        return [raw(f"s_memtime s[{r}:{r+1}]"),raw(f"s_memrealtime s[{r+2}:{r+3}]")]
    if o['stamps']: pre+=stamp()
    l=128; wv=129; h=130; l16=131; l32=132; t0=133; t1=134; q4=135; t2=136; g4=137; pg=138
    a(V("v_and_b32",l,"63",0)); a(V("v_lshrrev_b32",wv,"6",0)); a(raw("s_nop 0"))
    a(I(f"v_readfirstlane_b32 s{sW}, v{wv}",'rfl',[],[wv]))
    if o['share']:
        a(salu("s_and_b32 s3, s2, 7")); a(salu("s_lshr_b32 s6, s2, 4")); a(salu("s_lshl_b32 s3, s3, 4")); a(salu("s_add_u32 s3, s3, s6"))
        a(salu("s_lshr_b32 s7, s2, 3")); a(salu("s_and_b32 s7, s7, 1"))
    else:
        a(salu("s_lshr_b32 s3, s2, 1")); a(salu("s_and_b32 s7, s2, 1"))
    a(V("v_lshrrev_b32",h,"5",l)); a(V("v_and_b32",l16,"15",l)); a(V("v_and_b32",l32,"31",l)); a(V("v_lshrrev_b32",g4,"4",l))
    a(V("v_lshrrev_b32",t0,"4",0)); a(V("v_and_b32",t1,"15",t0)); a(V("v_xor_b32",t1,t1,l16)); a(V("v_lshlrev_b32",t1,"4",t1)); a(V("v_lshl_add_u32",DK,t0,"8",t1))
    if M16: a(V("v_and_b32",t1,"7",t0)); a(V("v_lshlrev_b32",t1,"1",t1))
    else: a(V("v_and_b32",t1,"3",t0)); a(V("v_lshlrev_b32",t1,"2",t1))
    a(V("v_xor_b32",t1,t1,l16)); a(V("v_lshlrev_b32",t1,"4",t1)); a(V("v_lshl_add_u32",DV,t0,"8",t1))
    if M16:
        a(V("v_and_b32",pg,"1",g4)); a(V("v_lshl_add_u32",pg,pg,"1",h))
        a(V("v_lshrrev_b32",t0,"2",0)); a(V("v_lshlrev_b32",t0,"9",t0)); a(V("v_and_b32",t1,"3",l)); a(V("v_lshl_add_u32",t0,t1,"4",t0))
        a(V("v_lshl_add_u32",240,l16,"2",pg)); a(V("v_lshlrev_b32",240,"2",240))
        a(V("v_and_b32",t2,"1",l)); a(V("v_lshlrev_b32",t2,"7",t2)); a(V("v_and_b32",t1,"2",l)); a(V("v_lshl_add_u32",t2,t1,"5",t2)); a(V("v_and_b32",t1,"60",l)); a(V("v_add_u32",241,t2,t1))
    else:
        a(V("v_lshlrev_b32",t0,"5",wv)); a(V("v_add_u32",t0,t0,l32)); a(V("v_lshlrev_b32",t0,"8",t0)); a(V("v_lshl_add_u32",t0,h,"4",t0))
    a(salu("s_lshl_b32 s6, s7, 16")); a(V("v_add_u32",QO[0],"s6",t0)); a(salu("s_xor_b32 s6, s6, 0x10000")); a(V("v_add_u32",QO[1],"s6",t0))
    a(V("v_lshlrev_b32",t0,"4",wv)); a(V("v_add_u32",t0,t0,l16)); a(V("v_lshlrev_b32",t0,"9",t0)); a(V("v_lshl_add_u32",t0,pg,"4",t0))
    a(V("v_add_u32",243,"s6",t0)); a(V("v_xor_b32",242,"0x10000",243)); QD=[242,243]
    a(raw("s_waitcnt lgkmcnt(0)"))
    if o['stamps']==2: pre+=stamp()
    a(salu("s_mul_i32 s6, s3, 0x40000"))
    for sr,p in ((sK,42),(sV,44)):
        a(salu(f"s_add_u32 s{sr}, s{p}, s6")); a(salu(f"s_addc_u32 s{sr+1}, s{p+1}, 0")); a(salu(f"s_mov_b32 s{sr+2}, 0x40000")); a(salu(f"s_mov_b32 s{sr+3}, 0x20000"))
    a(salu(f"s_lshl_b32 s{sW}, s{sW}, 10"))
    a(salu(f"s_cmp_ge_u32 s{sW}, 4096")); a(raw("s_cselect_b64 vcc, -1, 0"))
    nlab=[0]
    def only(grp,lst):
        if not lst: return []
        nlab[0]+=1; lb=f"L_g{nlab[0]}"
        for x in lst: x.g=grp
        return [raw(f"s_cbranch_vcc{'nz' if grp=='A' else 'z'} {lb}")]+lst+[I(lb+":",'label')]
    LAG=o['lag']; NR=o['nr']; VB=NR*8192; HB=(NR//2)*8192; SO=[240,241]
    nt=POL[o['nt_ld']]
    a(salu(f"s_cselect_b32 s48, {LAG*8192}, 0")); a(salu(f"s_cselect_b32 s49, {VB}, 0")); a(salu(f"s_add_u32 s35, s{sW}, s48")); a(salu("s_sub_u32 s49, s35, s49"))
    def dma2(kind,U):
        if not LAG: return dma(kind,U)
        if not o['shift']: return only('A',dma(kind,U)+dma(kind,U,4096))
        if U+LAG>=32: return only('A',dma(kind,U))
        r=dma(kind,U); r[2].tagB=(kind,U+LAG)
        return [salu(f"s_add_u32 m0, s{35 if U%NR+LAG<NR else 49}, {(0 if kind=='K' else VB)+(U%NR)*8192}"), salu(f"s_add_u32 s{sOFF}, s48, {U*8192}"), r[2]]
    def dma(kind,U,ex=0):
        base=(0 if kind=='K' else VB)+(U%NR)*8192+ex; sr=sK if kind=='K' else sV
        return [salu(f"s_add_u32 m0, s{sW}, {base}"), salu(f"s_mov_b32 s{sOFF}, {U*8192+ex}"),
                I(f"buffer_load_dwordx4 v{DK if kind=='K' else DV}, s[{sr}:{sr+3}], s{sOFF} offen{POL[o['nt_dma']]} lds",'dma',[],[DK,DV],tag=(kind,U))]
    if o['cpf']:
        pf=[raw("s_getpc_b64 s[6:7]"), V("v_and_b32",T,"255",0), V("v_lshlrev_b32",T,"7",T), V("v_mov_b32",T+1,"s7"),
            valu(f"v_add_co_u32 v{T}, s[98:99], s6, v{T}",[T],[T]), raw("s_nop 1"), valu(f"v_addc_co_u32 v{T+1}, s[98:99], v{T+1}, 0, s[98:99]",[T+1],[T+1]),
            I(f"global_load_dword v{T+2}, v[{T}:{T+1}], off",'vld',[T+2],[T,T+1])]
        pre+=only('B',pf)
    pre+=dma('K',0)+dma('K',1)
    if o['stamps']==2: pre+=stamp()
    a(salu("s_mul_i32 s6, s3, 253952"))
    for srs,p in ((sQ,40),(sO,46)):
        a(salu(f"s_add_u32 s{srs[0]}, s{p}, s6")); a(salu(f"s_addc_u32 s{srs[0]+1}, s{p+1}, 0")); a(salu(f"s_mov_b32 s{srs[0]+2}, 126976")); a(salu(f"s_mov_b32 s{srs[0]+3}, 0x20000"))
        a(salu(f"s_add_u32 s{srs[1]}, s{srs[0]}, 126976")); a(salu(f"s_addc_u32 s{srs[1]+1}, s{srs[0]+1}, 0")); a(salu(f"s_mov_b32 s{srs[1]+2}, 126976")); a(salu(f"s_mov_b32 s{srs[1]+3}, 0x20000"))
    def bperm(x,idx): return I(f"ds_bpermute_b32 v{x}, v{idx}, v{x}",'ds',[x],[x,idx])
    def qfix(X,s): return [bperm(X+4*s+k,240) for k in range(4)]
    def qload(p,s):
        d=(QA,QB)[p]+4*s; off=(s%2)*256+(s//2)*64 if M16 else s*32
        qo=(QO if o['qbp']>>p&1 else QD)[p]
        return I(f"buffer_load_dwordx4 {vr(d,4)}, v{qo}, s[{sQ[p]}:{sQ[p]+3}], 0 offen offset:{off}{nt}",'vld',R(d,4),[qo])
    pre+=only('A',[qload(0,s) for s in QORD]) if LAG and o['bq0']!=2 else [qload(0,s) for s in QORD]
    if o['stamps']==2: pre+=stamp()
    issued={('K',0),('K',1)}
    order=[(kd,u) for U in range(2,9) for kd,u in (('V',U-2),('K',U)) if u<8]
    for kd,u in order[:o['npre']]: pre+=dma(kd,u); issued.add((kd,u))
    if LAG and o['bq0']==1: pre+=only('B',[qload(0,s) for s in QORD])
    bl=[]
    for kd,u in order[o['npre']:o['npre']+o['nb0']]: bl+=dma(kd,u)+dma(kd,u,-4096); issued.add((kd,u))
    pre+=only('B',bl); bl=[]
    for kd,u in order[o['npre']+o['nb0']:o['npre']+o['nb0']+o['nb']]: bl+=dma(kd,u)+dma(kd,u,-4096); issued.add((kd,u))
    if o['stamps']==2:
        pre+=stamp(); a(I("s_nop 0",'other',wait={('K',0)})); pre+=stamp(); a(I("s_nop 0",'other',u=[QA])); pre+=stamp(); a(I("s_nop 0",'other',u=[QA+28])); pre+=stamp()
    a(V("v_lshrrev_b32",q4,"2",l16))
    if M16:
        for s in range(4):
            a(V("v_add_u32",t0,str(4*s),pg)); a(V("v_xor_b32",t0,t0,l16)); a(V("v_lshlrev_b32",t0,"4",t0)); a(V("v_lshl_add_u32",KAD+s,l16,"8",t0))
        a(V("v_lshrrev_b32",t1,"2",l))
        a(V("v_lshlrev_b32",t0,"8",t1)); a(V("v_and_b32",t2,"3",l)); a(V("v_lshl_add_u32",t0,t2,"3",t0)); a(V("v_add_u32",t0,str(VB),t0))
        a(V("v_and_b32",t1,"7",t1))
        for d in range(8): a(V("v_xor_b32",t2,str(d),t1)); a(V("v_lshl_add_u32",VAD+d,t2,"5",t0))
    else:
        for s in range(8):
            a(V("v_add_u32",t0,str(2*s),h)); a(V("v_xor_b32",t0,t0,l16)); a(V("v_lshlrev_b32",t0,"4",t0)); a(V("v_lshl_add_u32",KAD+s,l32,"8",t0))
        a(V("v_lshl_add_u32",t0,h,"2",q4)); a(V("v_lshlrev_b32",t0,"8",t0)); a(V("v_and_b32",t1,"16",l)); a(V("v_lshl_add_u32",t0,t1,"1",t0))
        a(V("v_and_b32",t1,"1",l)); a(V("v_lshl_add_u32",t0,t1,"4",t0)); a(V("v_and_b32",t1,"2",l)); a(V("v_lshl_add_u32",t0,t1,"2",t0))
        a(V("v_add_u32",t0,"0x10000",t0))
        for d in range(4): a(V("v_xor_b32",t2,str(d),q4)); a(V("v_lshl_add_u32",VAD+d,t2,"6",t0))
    c=(128**-0.5)*math.log2(math.e)
    a(salu(f"s_mov_b32 s{sC}, 0x{f2u(c):08x}"))
    chi=f2u(c)>>16; clo=f2u(c-struct.unpack('<f',struct.pack('<I',chi<<16))[0]); clo=(clo+0x8000)>>16
    def presc(p,s):
        r=[]
        for k in range(4):
            x=(QA,QB)[p]+4*s+k; t=T+2*(k%2)
            if o['presc']==1:
                r+=[I(f"v_dot2_f32_bf16 v{t}, v{x}, s{sC2}, 0 op_sel:[0,0,0] op_sel_hi:[0,1,0]",'dot',[t],[x]), I(f"v_dot2_f32_bf16 v{t+1}, v{x}, s{sC2}, 0 op_sel:[1,0,0] op_sel_hi:[1,1,0]",'dot',[t+1],[x])]
            elif p==0:
                r+=[V("v_lshlrev_b32",t,"16",x),V("v_and_b32",t+1,"0xffff0000",x),valu(f"v_pk_mul_f32 {vr(t,2)}, {vr(t,2)}, s[{sC}:{sC+1}] op_sel_hi:[1,0]",[t,t+1],[t,t+1])]
            else:
                r+=[V("v_lshlrev_b32",t,"16",x),V("v_and_b32",t+1,"0xffff0000",x),V("v_mul_f32",t,f"s{sC}",t),V("v_mul_f32",t+1,f"s{sC}",t+1)]
            if k>0: r.append(V("v_cvt_pk_bf16_f32",x-1,T+2*((k-1)%2),T+2*((k-1)%2)+1))
        r.append(V("v_cvt_pk_bf16_f32",(QA,QB)[p]+4*s+3,T+2,T+3))
        return r
    a(salu(f"s_mov_b32 s{sFLAG+4}, 0x3f803f80"))
    if o['msum']:
        for k in range(4): a(V("v_mov_b32",ONE+k,"0x3f803f80"))
    else:
        for p in range(2):
            for x in L[p]: a(V("v_mov_b32",x,"0")); a(V("v_mov_b32",x+1,"0"))

    if o['prio']:
        a(salu(f"s_cmp_ge_u32 s{sW}, 4096")); a(raw("s_cbranch_scc0 L_prio")); a(raw("s_setprio 1")); a(I("L_prio:",'label'))
    NU=32; NFR=o['nfr']; FRB=[FR+4*k for k in range(8)]+[144,148,152,156,168,172,244,234]; S0=S[0]; P0=P[0]
    def perm(n,x,y): return I(f"v_permlane{n}_swap_b32 v{x}, v{y}",'perm',[x,y],[x,y])
    def xred(op,regs,tmps):
        r=[]
        for n in (16,32): r+=[V("v_mov_b32",t,x) for x,t in zip(regs,tmps)]+[perm(n,x,t) for x,t in zip(regs,tmps)]+[V(op,x,x,t) for x,t in zip(regs,tmps)]
        return r
    def bias(U): return HB if (NR>8 and U%NR>=NR//2) else 0
    def rebias(regs,U):
        d=bias(U)-bias(U-1) if U>0 else 0
        return [V("v_add_u32" if d>0 else "v_subrev_u32",x,str(abs(d)),x) for x in regs] if d else []
    def kread(U,s): ad=KAD+s%4; fb=FRB[s]; return I(f"ds_read_b128 {vr(fb,4)}, v{ad} offset:{(U%NR)*8192-bias(U)+(s//4)*4096}",'ds',R(fb,4),[ad])
    def vfb(j): return FRB[(8+j)%NFR]
    def vread(U,j,u2): fb=vfb(j)+2*u2; return I(f"ds_read_b64_tr_b16 {vr(fb,2)}, v{VAD+j} offset:{(U%NR)*8192-bias(U)+u2*4096}",'ds',R(fb,2),[VAD+j])
    bs=[U for U in range(-1,NU-1) if U<o['early'] or (U-o['early'])%o['per']==o['per']-1]
    def nvp(X): return o['nvpre'] if 3<=X<NU-1 else 0
    def nkm(X): return o['nkm'] if 3<=X<NU else 0
    def bwait(U):
        nx=[x for x in bs if x>U]; U2=nx[0] if nx else NU
        return {('K',x) for x in range(U+2 if U>=0 else 0,min(U2+2,NU))}|{('V',x) for x in range(NU) if U<=(x-1 if nvp(x) else x)<U2}
    def cbar(U,grp):
        if grp=='B': U+=LAG
        return only(grp,[I("s_barrier",'other',wait=bwait(U))]) if U in bs else []
    extra={U:[] for U in range(-1,NU+1)}
    mextra={U:[] for U in range(-1,NU+2)}
    vextra={U:[] for U in range(-1,NU+1)}
    preiss=set(issued); mainiss=[]
    for U in range(0,NU):
        b=max(x for x in bs if x<=U-1)
        todo=sorted([(X-1 if kd=='K' else X+0.5,kd,X) for X in range(NU) for kd in 'KV' if (kd,X) not in issued and X-NR<=max((b if kd=='K' else b-1)-LAG,-1)])
        for _,kd,X in todo[:(o['dma_e'] if U<o['dma_en'] else o['dma_s'])]: issued.add((kd,X)); mainiss.append((kd,X,U)); (mextra if o['dmam'] else extra)[U+o['dmam']].append(dma2(kd,X) if not (o['nodma'] and X>=8) else [I("s_nop 0",'dma',tag=(kd,X))])
    assert len(issued)==2*NU
    if LAG and o['shift']:
        Bhave=set(preiss)|{(kd,X+LAG) for kd,X,U in mainiss}
        for kd,X in sorted([(kd,X) for kd in 'KV' for X in range(NU) if (kd,X) not in Bhave],key=lambda z:z[1]-1 if z[0]=='K' else z[1]+0.5): assert X<NR; bl+=dma(kd,X)
        for kd,X,U in mainiss:
            b2=max(x for x in bs if x<=U+LAG); assert X+LAG-NR<=max((b2 if kd=='K' else b2-1)-LAG,-1),(kd,X,U)
    for j in range(4): extra[o['qn0']+(o['qn1']-o['qn0'])*j//4].append([qload(1,QORD[2*j]),qload(1,QORD[2*j+1])])
    for j,s in enumerate(QORD if o['qbp']&2 else []): extra[o['qf0']+(16-o['qf0'])*j//8].append(qfix(QB,s))
    if o['presc']:
        for j,s in enumerate(QORD): vextra[o['ps0']+(16-o['ps0'])*j//8]+=presc(1,s)
    nts=POL[o['nt_st']]
    def fin(p):
        l0,l1=LA if o['msum'] else L[p]
        thr=V("v_mov_b32",231,f"0x{f2u(2.0**(-1 if o['force_slow'] else 30)):08x}")
        r=[] if o['msum'] else xred("v_add_f32",[l0,l1],[l0+1,l1+1])
        return r+[trans(f"v_rcp_f32 v{RI[0]}, v{l0}",[RI[0]],[l0]),trans(f"v_rcp_f32 v{RI[1]}, v{l1}",[RI[1]],[l1]),thr,V("v_add_f32",233,l0,l1),V("v_add_f32",233,233,RI[0]),V("v_add_f32",233,233,RI[1]),
                  valu(f"v_cmp_nlt_f32 s[{sFLAG+2*p}:{sFLAG+2*p+1}], v{233}, v{231}",[],[233,231])]
    def conv(p,d,pk):
        X=(QA,QB)[p]; cv=[]; pend=None
        for k in range(8):
            r=O+16*d+2*k; qb=(k//2)%2; ri=RI[qb]; x=X+8*d+4*qb+2*(k//4)+k%2
            if pk: cv.append(valu(f"v_pk_mul_f32 {vr(r,2)}, {vr(r,2)}, {vr(ri,2)} op_sel_hi:[1,0]",[r,r+1],[r,r+1,ri]))
            else: cv+=[V("v_mul_f32",r,r,ri),V("v_mul_f32",r+1,r+1,ri)]
            if pend: cv.append(pend)
            pend=V("v_cvt_pk_bf16_f32",x,r,r+1)
        return cv+[pend]
    def store(p,d,g):
        x=(QA,QB)[p]+8*d+4*g
        if o['hackst']: return [V("v_and_b32",T,"0xffffe000",QO[p]),valu(f"v_mbcnt_lo_u32_b32 v{T+1}, -1, 0",[T+1],[]),valu(f"v_mbcnt_hi_u32_b32 v{T+1}, -1, v{T+1}",[T+1],[T+1]),V("v_lshl_add_u32",T,T+1,"4",T),V("v_add_u32",T,str((2*d+g)*1024),T),
            I(f"buffer_store_dwordx4 {vr(x,4)}, v{T}, s[{sO[p]}:{sO[p]+3}], 0 offen{nts}",'vst',[],R(x,4)+[T],tag=('O',p))]
        return [perm(16,x,x+2),perm(16,x+1,x+3)]+[bperm(x+k,241) for k in range(4 if o['sbp']>>p&1 else 0)]+[I(f"buffer_store_dwordx4 {vr(x,4)}, v{(QO if o['sbp']>>p&1 else QD)[p]}, s[{sO[p]}:{sO[p]+3}], 0 offen offset:{d*64+256*g}{nts}",'vst',[],R(x,4)+[QO[p],QD[p]],tag=('O',p))]
    def store2(p,e,qb,X=None,pol=None):
        X=(QA,QB)[p] if X is None else X; A=X+16*e+4*qb; B=A+8; pol=nts if pol is None else pol
        r=[perm(16,A,A+2),perm(16,A+1,A+3),perm(16,B,B+2),perm(16,B+1,B+3)]+[V("v_mov_b32",T+k,B+k) for k in range(4)]
        r+=[I(f"v_mov_b32_dpp v{B+k}, v{A+k} row_shl:4 row_mask:0xf bank_mask:0x5",'perm',[B+k],[A+k,B+k]) for k in range(4)]
        r+=[I(f"v_mov_b32_dpp v{A+k}, v{T+k} row_shr:4 row_mask:0xf bank_mask:0xa",'perm',[A+k],[T+k,A+k]) for k in range(4)]
        st=[I(f"buffer_store_dwordx4 {vr(x,4)}, v{SO[p]}, s[{sO[p]}:{sO[p]+3}], 0 offen offset:{128*e+256*qb+2048*i}{pol}",'vst',[],R(x,4)+[SO[p]],tag=('O',p)) for i,x in ((1,B),(0,A))]
        return r,st
    for j in range(4 if o['dppst'] else 0):
        r,st=store2(0,j//2,j%2); w=o['st1']-o['st0']
        vextra[o['st0']+w*(2*j)//8]+=r+st[:1]; vextra[o['st0']+w*(2*j+1)//8]+=st[1:]
    for j in range(0 if o['dppst'] else 8):
        if o['stpair']: vextra[o['st0']+(o['st1']-o['st0'])*(j//2)//4]+=store(0,(j//4)*2+j%2,(j//2)%2)
        else:
            z=store(0,(j//4)*2+j%2,(j//2)%2); u=o['st0']+(o['st1']-o['st0'])*j//8; vextra[u]+=z[:-1]; extra[u+1].append(z[-1:])
    body=[I("s_barrier",'other',wait=bwait(-1))]+[kread(0,s) for s in range(8)]
    if LAG:
        qb_=[] if o['bq0'] else [qload(0,s) for s in QORD]
        for U in range(-LAG,0):
            if o['qsplit']:
                if U+LAG==0: body+=only('B',qb_[:o['qsplit']])
                if U+LAG==1: body+=only('B',qb_[o['qsplit']:]+bl if o['bqfirst'] else bl+qb_[o['qsplit']:])
            elif U+LAG==o['bqpos']: body+=only('B',qb_+bl if o['bqfirst'] else bl+qb_)
            if U<-1: body+=cbar(U,'B')
        if not (o['qbp']&1 or o['presc']): body+=cbar(-1,'B')
        if o['bq0']!=2 or bl: body+=only('A',[I("s_nop 0",'other',u=R(QA,32))])+only('B',[I("s_nop 0",'other',u=R(QA,32))])
    if o['presc']:
        assert not o['msum'] and not o['qbp']
        for s in QORD: body+=presc(0,s)
        if LAG: body+=cbar(-1,'B')
    if o['qbp']&1:
        for s in QORD: body+=qfix(QA,s)
        if LAG: body+=cbar(-1,'B')
    fpend=[]
    def fmx(k): return [valu(f"v_fma_f32 v{r}, v{r}, s{sC}, -v{MC[k//4]}",[r],[r,MC[k//4]]) for r in (S0+2*k,S0+2*k+1)]
    for U in range(NU+1):
        if o['stamps']==4:
            if U in (22,23,24): body+=stamp()
        elif o['stamps'] and U in ([0,1,5,9,13,17,21,25,29,32] if o['stamps']==1 else [0,1,5] if o['stamps']==2 else [0,1,9,17,25,32]): body+=stamp()
        body.append(I(f"s_setprio {o['pm1']}",'other',wait={'LGALL'} if o['lg0'] else None))
        ms=[]; rd=[vread(U-1,j,u2) if j>=nvp(U-1) else None for j in range(8) for u2 in range(2)] if U>=1 else []
        npre_v=0
        if U<NU:
            q=(QA,QB)[U//16]
            for s in range(8):
                kt,ds=s//4,s%4
                for qb in range(2): dd=S0+8*qb+4*kt; ms.append(mfma16(dd,FRB[s],q+4*(2*ds+qb),(CI[qb] if o['presc'] and U%16>=1 else None) if ds==0 else dd))
        else: rd=[]
        mx=[]
        if U==17 and o['cvspill']: mx=conv(0,3,0)
        for i,m in enumerate(ms):
            body.append(m)
            if i==o['pswitch']: body.append(raw(f"s_setprio {o['pm2']}"))
            if rd and rd[i]: body.append(rd[i])
            if mx: body+=mx[i*len(mx)//16:(i+1)*len(mx)//16]
        if U>=1:
            first=(U-1)%16==0
            if o['msum']: body+=[mfma16(LA[qb],ONE,P0+4*qb,None if first else LA[qb]) for qb in range(2)]
            if o['pvord']:
                for qb in range(2):
                    for j in range(8): dd=O+8*j+4*qb; body.append(mfma16(dd,vfb(j),P0+4*qb,None if first else dd))
            for j in range(0 if o['pvord'] else 8):
                for qb in range(2): dd=O+8*j+4*qb; body.append(mfma16(dd,vfb(j),P0+4*qb,None if first else dd))
                jj=j if NFR==16 else j+1
                if U+1<NU and 8-nkm(U+1)<=jj<8: body.append(kread(U+1,jj))
                if U<NU and U%16 and j<o['nfm']:
                    f2=fmx(j); body.insert(len(body)-(2 if body[-1].k=='ds' else 1),f2[0]); body.append(f2[1])
                if j%2==1 and j//2<len(mextra[U]): body+=mextra[U][j//2]
                if U==NU and o['fint']:
                    if j==1 and o['msum']: body+=fin(1)
                    if j in (3,5,7):
                        d=(j-3)//2; z0,z1=store(1,d,0),store(1,d,1); body+=conv(1,d,1)+fpend+z0[:-1]+z1[:-1]; fpend=z0[-1:]+z1[-1:]
        body.append(raw(f"s_setprio {o['pv']}"))
        if o['stamps']==4 and U in (22,23): body+=stamp()
        body+=cbar(U,'B')
        if o['stamps']==4 and U in (22,23): body+=stamp()
        if U==NU: break
        s=S0; p=U//16; lst=(rebias(R(KAD,4),U+1) if U+1<NU and not o['nkm'] else [])+rebias(R(VAD,8),U)
        if U%16==0:
            for k in (0,3,5): lst+=[V("v_max3_f32",P0+i,*( [s+8*i,s+8*i+1,s+8*i+2] if k==0 else [P0+i,s+8*i+k,s+8*i+k+1])) for i in range(2)]
            lst+=[V("v_max_f32",P0+i,P0+i,s+8*i+7) for i in range(2)]+xred("v_max_f32",[P0,P0+1],[P0+2,P0+3])
            lst+=[V("v_sub_f32",CI[i]+k,"0",P0+i) for k in range(4) for i in range(2)] if o['presc'] else [V("v_mul_f32",MC[i],f"s{sC}",P0+i) for i in range(2)]
        def fm(k):
            if U%16 and k<o['nfm']: return []
            if o['presc']: return [V("v_add_f32",r,r,CI[k//4]) for r in (s+2*k,s+2*k+1)] if U%16==0 else []
            return [valu(f"v_fma_f32 v{r}, v{r}, s{sC}, -v{MC[k//4]}",[r],[r,MC[k//4]]) for r in (s+2*k,s+2*k+1)]
        def ex(r): return [trans(f"v_exp_f32 v{r}, v{r}",[r],[r])]
        def ad(k): la=L[p][k//4]; return [] if o['msum'] or o['dsum'] else [V("v_add_f32",la,la,s+2*k),V("v_add_f32",la+1,la+1,s+2*k+1)]
        def cvt(k): return [V("v_cvt_pk_bf16_f32",P0+k,s+2*k,s+2*k+1)]
        def dot(k): la=L[p][k//4]+k%2; return [I(f"v_dot2c_f32_bf16 v{la}, s{sFLAG+4}, v{P0+k}",'dot',[la],[la,P0+k])] if o['dsum'] else []
        units=[fm(0)]
        for k in range(8):
            units+=[ex(s+2*k), fm(k+1) if k<7 else [], ex(s+2*k+1)]
            if k>0: units.append(ad(k-1))
            if k%2==0 and k>0: units.append(cvt(k-2)+cvt(k-1))
            if k%2==1 and k>1: units.append(dot(k-3)+dot(k-2))
        units+=[ad(7),cvt(6)+cvt(7),dot(6)+dot(7)]
        units=[u for u in units if u]
        side=([[kread(U+1,k)] for k in range(8-nkm(U+1))]+[[vread(U,j,u2)] for j in range(nvp(U)) for u2 in range(2)] if U+1<NU else [[vread(U,j,u2)] for j in range(8) for u2 in range(2)])
        ex_=extra[U]; sidem=[]
        for k in range(max(len(side),len(ex_))):
            if k<len(ex_): sidem.append(ex_[k])
            if k<len(side): sidem.append(side[k])
        nu=len(units)-o['sidetail']
        for k,u in enumerate(units):
            lst+=u
            if k<nu:
                for z in sidem[k*len(sidem)//nu:(k+1)*len(sidem)//nu]: lst+=z
        if U%16==15 and not o['msum']: lst+=[V("v_add_f32",x,x,x+1) for x in L[p]]+fin(p)
        if U==16:
            pr=fin(0) if o['msum'] else []
            for d in range(3 if o['cvspill'] else 4): pr+=conv(0,d,o['pkcv'])
            lst=lst+pr
        body+=lst+vextra[U]+(rebias(R(KAD,4),U+2) if U+2<NU and o['nkm'] else [])
        if o['stamps']==4 and U in (22,23): body+=stamp()
        body+=cbar(U,'A')
    if o['msum'] and not o['fint']: body+=fin(1)
    if o['dppst']:
        for e in range(2):
            body+=conv(1,2*e,1)+conv(1,2*e+1,1)
            for qb in range(2): r,st=store2(1,e,qb); body+=r+st
    elif o['stpair']:
        for d in (0,2): body+=conv(1,d,1)+conv(1,d+1,1)+store(1,d,0)+store(1,d+1,0)+store(1,d,1)+store(1,d+1,1)
    else:
        pend=fpend
        for d in range(3 if o['fint'] else 0,4):
            z0,z1=store(1,d,0),store(1,d,1); body+=conv(1,d,1)+pend+z0[:-1]+z1[:-1]; pend=z0[-1:]+z1[-1:]
        body+=pend
    post=[]
    if o['stamps']==3:
        post+=stamp(); post.append(I("s_nop 0",'other',wait={'VMALL'})); post+=stamp()
        post+=[raw("s_waitcnt lgkmcnt(0)"), salu(f"s_add_u32 s3, s2, s{sW}"), salu("s_cmp_lg_u32 s3, 133"), raw("s_cbranch_scc1 L_end"),
               salu("s_mov_b32 s8, s4"),salu("s_mov_b32 s9, s5"),salu("s_mov_b32 s10, 256"),salu("s_mov_b32 s11, 0x20000"), V("v_mov_b32",T,"0"), raw("s_mov_b64 exec, 1")]
        for j in range(1,len(stl)):
            post+=[salu(f"s_sub_u32 s3, s{50+4*j}, s50"),salu(f"s_sub_u32 s6, s{52+4*j}, s52"),V("v_mov_b32",T+2,"s3"),V("v_mov_b32",T+3,"s6"),
                   I(f"buffer_store_dwordx2 {vr(T+2,2)}, v{T}, s[8:11], 0 offen offset:{8*(j-1)}",'vst',[],[T,T+2,T+3])]
    elif o['stamps']:
        post+=stamp(); post.append(I("s_nop 0",'other',wait={'VMALL'})); post+=stamp()
        post+= [raw("s_waitcnt lgkmcnt(0)"), salu("s_mov_b32 s8, s4"),salu("s_mov_b32 s9, s5"),salu("s_mov_b32 s10, 0x100000"),salu("s_mov_b32 s11, 0x20000"),
                salu("s_lshl_b32 s3, s2, 11"), salu(f"s_lshr_b32 s6, s{sW}, 2"), salu("s_add_u32 s3, s3, s6"), V("v_mov_b32",T,"s3"), raw("s_mov_b64 exec, 1")]
        for j in range(2*len(stl)):
            post+=[V("v_mov_b32",T+2,f"s{50+2*j}"),V("v_mov_b32",T+3,f"s{51+2*j}"), I(f"buffer_store_dwordx2 {vr(T+2,2)}, v{T}, s[8:11], 0 offen offset:{8*j}",'vst',[],[T,T+2,T+3])]
        post.append(raw("s_mov_b64 exec, -1"))
    slow=[]
    if o['slow'] and not o['stamps']:
        from slowpath import slowpath
        slow=slowpath(locals())
    ins=insert_waits(pre+body+post+slow)
    ins,nn=fix_hazards(ins,verbose=o['verbose'])
    txt=[x.t if x.k=='label' else "    "+x.t for x in ins if x.t]
    hdr=open('cdna_kernels/%s.s.ref'%NAME).read().split('; Override')[0]
    out=hdr+f"; @launch grid=(256,1,1) block=(512,1,1) lds={2*VB}\n.amdgcn_target \"amdgcn-amd-amdhsa--gfx950\"\n.text\n.globl {NAME}_kernel\n.p2align 8\n.type {NAME}_kernel,@function\n{NAME}_kernel:\n"
    out+="\n".join(txt)+"\nL_end:\n    s_endpgm\n"
    out+=f""".section .rodata,"a"
.p2align 6
.amdhsa_kernel {NAME}_kernel
  .amdhsa_next_free_vgpr 256
  .amdhsa_next_free_sgpr 102
  .amdhsa_accum_offset 256
  .amdhsa_group_segment_fixed_size 0
  .amdhsa_kernarg_size 48
  .amdhsa_user_sgpr_count 2
  .amdhsa_user_sgpr_kernarg_segment_ptr 1
  .amdhsa_system_sgpr_workgroup_id_x 1
.end_amdhsa_kernel
"""
    return out,len(ins),nn
if __name__=="__main__":
    path=sys.argv[1]; kw={}
    for s in sys.argv[2:]:
        k,v=s.split('='); kw[k]=float(v) if '.' in v else int(v)
    out,n,nn=gen(**kw); open(path,'w').write(out); print(path,"insts",n,"nops",nn)
```

```python
import sys, math, struct
from asmlib import *
NAME="standalone__mha_softmax__near_ridge"
def f2u(x): return struct.unpack('<I',struct.pack('<f',x))[0]
DEF=dict(apre=1, dsum=0, nvpre=0, nkm=6, nfm=0, cpf=0, per=2, fint=1, nb0=0, qsplit=0, qbp=0, sbp=2, nr=10, dppst=0, qf0=12, shift=1, pv=3, pvord=0, hackst=0, bq0=1, nb=0, bqfirst=1, bqpos=0, lag=2, bq=0, lg0=1, dmam=0, nodma=0, nfr=14, dma_e=3, dma_en=4, dma_s=2, pm1=0, pm2=1, pswitch=8, sidetail=3, cvspill=0, pkcv=0, presc=2, msum=1, ps0=10, nt_dma=1, stpair=0, npre=4, maxdma=4, stamps=0, PD=6, BOFF=4, early=6, prio=0, qn0=7, qn1=13, st0=18, st1=30, nt_st=3, nt_ld=1, share=1, slow=1, force_slow=0, pkadd=0, dmaspread=1.0, m16=1, verbose=0, nosm=0, nold=0)
POL=['',' nt',' sc1',' sc0 sc1',' nt sc1',' sc0 nt sc1',' sc0 nt']
QORD=[0,2,1,3,4,6,5,7]
def gen(**kw):
    o=dict(DEF); o.update(kw); M16=o['m16']; G=2 if M16 else 1
    O=0; QA=64; QB=96; S=[128,144]; P=[160,168]; FR=176; NFR=8
    NKA=4 if M16 else 8; KAD=208; VAD=KAD+NKA; DK=220; DV=221; QO=[222,223]; MC=[224,225]; L=[[226,228],[252,254]]; LA=[226,252]; RI=[230,232]; T=234; CI=[240,244]; IQ,IS,QD0=(224,225,238) if o['presc'] else (240,241,242); ONE=248; sC2=35
    sQ=[8,12]; sK=16; sV=20; sO=[24,28]; sC=32; sW=33; sOFF=34; sFLAG=36
    pre=[]; a=pre.append
    def V(op,d,*src):
        regs=[x for x in src if isinstance(x,int)]
        return valu(f"{op} v{d}, "+", ".join(f"v{x}" if isinstance(x,int) else x for x in src),[d],regs)
    a(raw("s_cmp_ge_u32 s2, 256")); a(raw("s_cbranch_scc1 L_end"))
    a(raw("s_load_dwordx4 s[40:43], s[0:1], 0")); a(raw("s_load_dwordx4 s[44:47], s[0:1], 16")); a(raw(f"s_load_dwordx2 s[4:5], s[0:1], {32 if o['stamps']==3 else 40}"))
    stl=[]
    def stamp():
        n=len(stl); stl.append(n); r=50+4*n; assert r+4<=102
        return [raw(f"s_memtime s[{r}:{r+1}]"),raw(f"s_memrealtime s[{r+2}:{r+3}]")]
    if o['stamps']: pre+=stamp()
    l=128; wv=129; h=130; l16=131; l32=132; t0=133; t1=134; q4=135; t2=136; g4=137; pg=138
    a(V("v_and_b32",l,"63",0)); a(V("v_lshrrev_b32",wv,"6",0)); a(raw("s_nop 0"))
    a(I(f"v_readfirstlane_b32 s{sW}, v{wv}",'rfl',[],[wv]))
    if o['share']:
        a(salu("s_and_b32 s3, s2, 7")); a(salu("s_lshr_b32 s6, s2, 4")); a(salu("s_lshl_b32 s3, s3, 4")); a(salu("s_add_u32 s3, s3, s6"))
        a(salu("s_lshr_b32 s7, s2, 3")); a(salu("s_and_b32 s7, s7, 1"))
    else:
        a(salu("s_lshr_b32 s3, s2, 1")); a(salu("s_and_b32 s7, s2, 1"))
    a(V("v_lshrrev_b32",h,"5",l)); a(V("v_and_b32",l16,"15",l)); a(V("v_and_b32",l32,"31",l)); a(V("v_lshrrev_b32",g4,"4",l))
    a(V("v_lshrrev_b32",t0,"4",0)); a(V("v_and_b32",t1,"15",t0)); a(V("v_xor_b32",t1,t1,l16)); a(V("v_lshlrev_b32",t1,"4",t1)); a(V("v_lshl_add_u32",DK,t0,"8",t1))
    if M16: a(V("v_and_b32",t1,"7",t0)); a(V("v_lshlrev_b32",t1,"1",t1))
    else: a(V("v_and_b32",t1,"3",t0)); a(V("v_lshlrev_b32",t1,"2",t1))
    a(V("v_xor_b32",t1,t1,l16)); a(V("v_lshlrev_b32",t1,"4",t1)); a(V("v_lshl_add_u32",DV,t0,"8",t1))
    if M16:
        a(V("v_and_b32",pg,"1",g4)); a(V("v_lshl_add_u32",pg,pg,"1",h))
        a(V("v_lshrrev_b32",t0,"2",0)); a(V("v_lshlrev_b32",t0,"9",t0)); a(V("v_and_b32",t1,"3",l)); a(V("v_lshl_add_u32",t0,t1,"4",t0))
        a(V("v_lshl_add_u32",IQ,l16,"2",pg)); a(V("v_lshlrev_b32",IQ,"2",IQ))
        a(V("v_and_b32",t2,"1",l)); a(V("v_lshlrev_b32",t2,"7",t2)); a(V("v_and_b32",t1,"2",l)); a(V("v_lshl_add_u32",t2,t1,"5",t2)); a(V("v_and_b32",t1,"60",l)); a(V("v_add_u32",IS,t2,t1))
    else:
        a(V("v_lshlrev_b32",t0,"5",wv)); a(V("v_add_u32",t0,t0,l32)); a(V("v_lshlrev_b32",t0,"8",t0)); a(V("v_lshl_add_u32",t0,h,"4",t0))
    a(salu("s_lshl_b32 s6, s7, 16")); a(V("v_add_u32",QO[0],"s6",t0)); a(salu("s_xor_b32 s6, s6, 0x10000")); a(V("v_add_u32",QO[1],"s6",t0))
    a(V("v_lshlrev_b32",t0,"4",wv)); a(V("v_add_u32",t0,t0,l16)); a(V("v_lshlrev_b32",t0,"9",t0)); a(V("v_lshl_add_u32",t0,pg,"4",t0))
    a(V("v_add_u32",QD0+1,"s6",t0)); a(V("v_xor_b32",QD0,"0x10000",QD0+1)); QD=[QD0,QD0+1]
    a(raw("s_waitcnt lgkmcnt(0)"))
    if o['stamps']==2: pre+=stamp()
    a(salu("s_mul_i32 s6, s3, 0x40000"))
    for sr,p in ((sK,42),(sV,44)):
        a(salu(f"s_add_u32 s{sr}, s{p}, s6")); a(salu(f"s_addc_u32 s{sr+1}, s{p+1}, 0")); a(salu(f"s_mov_b32 s{sr+2}, 0x40000")); a(salu(f"s_mov_b32 s{sr+3}, 0x20000"))
    a(salu(f"s_lshl_b32 s{sW}, s{sW}, 10"))
    a(salu(f"s_cmp_ge_u32 s{sW}, 4096")); a(raw("s_cselect_b64 vcc, -1, 0"))
    nlab=[0]
    def only(grp,lst):
        if not lst: return []
        nlab[0]+=1; lb=f"L_g{nlab[0]}"
        for x in lst: x.g=grp
        return [raw(f"s_cbranch_vcc{'nz' if grp=='A' else 'z'} {lb}")]+lst+[I(lb+":",'label')]
    LAG=o['lag']; NR=o['nr']; VB=NR*8192; HB=(NR//2)*8192; SO=[240,241]
    nt=POL[o['nt_ld']]
    a(salu(f"s_cselect_b32 s48, {LAG*8192}, 0")); a(salu(f"s_cselect_b32 s49, {VB}, 0")); a(salu(f"s_add_u32 s35, s{sW}, s48")); a(salu("s_sub_u32 s49, s35, s49"))
    def dma2(kind,U):
        if not LAG: return dma(kind,U)
        if not o['shift']: return only('A',dma(kind,U)+dma(kind,U,4096))
        if U+LAG>=32: return only('A',dma(kind,U))
        r=dma(kind,U); r[2].tagB=(kind,U+LAG)
        return [salu(f"s_add_u32 m0, s{35 if U%NR+LAG<NR else 49}, {(0 if kind=='K' else VB)+(U%NR)*8192}"), salu(f"s_add_u32 s{sOFF}, s48, {U*8192}"), r[2]]
    def dma(kind,U,ex=0):
        base=(0 if kind=='K' else VB)+(U%NR)*8192+ex; sr=sK if kind=='K' else sV
        return [salu(f"s_add_u32 m0, s{sW}, {base}"), salu(f"s_mov_b32 s{sOFF}, {U*8192+ex}"),
                I(f"buffer_load_dwordx4 v{DK if kind=='K' else DV}, s[{sr}:{sr+3}], s{sOFF} offen{POL[o['nt_dma']]} lds",'dma',[],[DK,DV],tag=(kind,U))]
    if o['cpf']:
        pf=[raw("s_getpc_b64 s[6:7]"), V("v_and_b32",T,"255",0), V("v_lshlrev_b32",T,"7",T), V("v_mov_b32",T+1,"s7"),
            valu(f"v_add_co_u32 v{T}, s[98:99], s6, v{T}",[T],[T]), raw("s_nop 1"), valu(f"v_addc_co_u32 v{T+1}, s[98:99], v{T+1}, 0, s[98:99]",[T+1],[T+1]),
            I(f"global_load_dword v{T+2}, v[{T}:{T+1}], off",'vld',[T+2],[T,T+1])]
        pre+=only('B',pf)
    pre+=dma('K',0)+dma('K',1)
    if o['stamps']==2: pre+=stamp()
    a(salu("s_mul_i32 s6, s3, 253952"))
    for srs,p in ((sQ,40),(sO,46)):
        a(salu(f"s_add_u32 s{srs[0]}, s{p}, s6")); a(salu(f"s_addc_u32 s{srs[0]+1}, s{p+1}, 0")); a(salu(f"s_mov_b32 s{srs[0]+2}, 126976")); a(salu(f"s_mov_b32 s{srs[0]+3}, 0x20000"))
        a(salu(f"s_add_u32 s{srs[1]}, s{srs[0]}, 126976")); a(salu(f"s_addc_u32 s{srs[1]+1}, s{srs[0]+1}, 0")); a(salu(f"s_mov_b32 s{srs[1]+2}, 126976")); a(salu(f"s_mov_b32 s{srs[1]+3}, 0x20000"))
    def bperm(x,idx): return I(f"ds_bpermute_b32 v{x}, v{idx}, v{x}",'ds',[x],[x,idx])
    def qfix(X,s): return [bperm(X+4*s+k,IQ) for k in range(4)]
    def qload(p,s):
        d=(QA,QB)[p]+4*s; off=(s%2)*256+(s//2)*64 if M16 else s*32
        qo=(QO if o['qbp']>>p&1 else QD)[p]
        return I(f"buffer_load_dwordx4 {vr(d,4)}, v{qo}, s[{sQ[p]}:{sQ[p]+3}], 0 offen offset:{off}{nt}",'vld',R(d,4),[qo])
    pre+=only('A',[qload(0,s) for s in QORD]) if LAG and o['bq0']!=2 else [qload(0,s) for s in QORD]
    if o['stamps']==2: pre+=stamp()
    issued={('K',0),('K',1)}
    order=[(kd,u) for U in range(2,9) for kd,u in (('V',U-2),('K',U)) if u<8]
    for kd,u in order[:o['npre']]: pre+=dma(kd,u); issued.add((kd,u))
    if LAG and o['bq0']==1: pre+=only('B',[qload(0,s) for s in QORD])
    bl=[]
    for kd,u in order[o['npre']:o['npre']+o['nb0']]: bl+=dma(kd,u)+dma(kd,u,-4096); issued.add((kd,u))
    pre+=only('B',bl); bl=[]
    for kd,u in order[o['npre']+o['nb0']:o['npre']+o['nb0']+o['nb']]: bl+=dma(kd,u)+dma(kd,u,-4096); issued.add((kd,u))
    if o['stamps']==2:
        pre+=stamp(); a(I("s_nop 0",'other',wait={('K',0)})); pre+=stamp(); a(I("s_nop 0",'other',u=[QA])); pre+=stamp(); a(I("s_nop 0",'other',u=[QA+28])); pre+=stamp()
    a(V("v_lshrrev_b32",q4,"2",l16))
    if M16:
        for s in range(4):
            a(V("v_add_u32",t0,str(4*s),pg)); a(V("v_xor_b32",t0,t0,l16)); a(V("v_lshlrev_b32",t0,"4",t0)); a(V("v_lshl_add_u32",KAD+s,l16,"8",t0))
        a(V("v_lshrrev_b32",t1,"2",l))
        a(V("v_lshlrev_b32",t0,"8",t1)); a(V("v_and_b32",t2,"3",l)); a(V("v_lshl_add_u32",t0,t2,"3",t0)); a(V("v_add_u32",t0,str(VB),t0))
        a(V("v_and_b32",t1,"7",t1))
        for d in range(8): a(V("v_xor_b32",t2,str(d),t1)); a(V("v_lshl_add_u32",VAD+d,t2,"5",t0))
    else:
        for s in range(8):
            a(V("v_add_u32",t0,str(2*s),h)); a(V("v_xor_b32",t0,t0,l16)); a(V("v_lshlrev_b32",t0,"4",t0)); a(V("v_lshl_add_u32",KAD+s,l32,"8",t0))
        a(V("v_lshl_add_u32",t0,h,"2",q4)); a(V("v_lshlrev_b32",t0,"8",t0)); a(V("v_and_b32",t1,"16",l)); a(V("v_lshl_add_u32",t0,t1,"1",t0))
        a(V("v_and_b32",t1,"1",l)); a(V("v_lshl_add_u32",t0,t1,"4",t0)); a(V("v_and_b32",t1,"2",l)); a(V("v_lshl_add_u32",t0,t1,"2",t0))
        a(V("v_add_u32",t0,"0x10000",t0))
        for d in range(4): a(V("v_xor_b32",t2,str(d),q4)); a(V("v_lshl_add_u32",VAD+d,t2,"6",t0))
    c=(128**-0.5)*math.log2(math.e)
    a(salu(f"s_mov_b32 s{sC}, 0x{f2u(c):08x}"))
    chi=f2u(c)>>16; clo=f2u(c-struct.unpack('<f',struct.pack('<I',chi<<16))[0]); clo=(clo+0x8000)>>16
    def presc(p,s):
        r=[]
        for k in range(4):
            x=(QA,QB)[p]+4*s+k; t=T+2*(k%2)
            if o['presc']==1:
                r+=[I(f"v_dot2_f32_bf16 v{t}, v{x}, s{sC2}, 0 op_sel:[0,0,0] op_sel_hi:[0,1,0]",'dot',[t],[x]), I(f"v_dot2_f32_bf16 v{t+1}, v{x}, s{sC2}, 0 op_sel:[1,0,0] op_sel_hi:[1,1,0]",'dot',[t+1],[x])]
            elif p==0:
                r+=[V("v_lshlrev_b32",t,"16",x),V("v_and_b32",t+1,"0xffff0000",x),valu(f"v_pk_mul_f32 {vr(t,2)}, {vr(t,2)}, s[{sC}:{sC+1}] op_sel_hi:[1,0]",[t,t+1],[t,t+1])]
            else:
                r+=[V("v_lshlrev_b32",t,"16",x),V("v_and_b32",t+1,"0xffff0000",x),V("v_mul_f32",t,f"s{sC}",t),V("v_mul_f32",t+1,f"s{sC}",t+1)]
            if k>0: r.append(V("v_cvt_pk_bf16_f32",x-1,T+2*((k-1)%2),T+2*((k-1)%2)+1))
        r.append(V("v_cvt_pk_bf16_f32",(QA,QB)[p]+4*s+3,T+2,T+3))
        return r
    a(salu(f"s_mov_b32 s{sFLAG+4}, 0x3f803f80"))
    if o['msum']:
        for k in range(4): a(V("v_mov_b32",ONE+k,"0x3f803f80"))
    else:
        for p in range(2):
            for x in L[p]: a(V("v_mov_b32",x,"0")); a(V("v_mov_b32",x+1,"0"))

    if o['prio']:
        a(salu(f"s_cmp_ge_u32 s{sW}, 4096")); a(raw("s_cbranch_scc0 L_prio")); a(raw("s_setprio 1")); a(I("L_prio:",'label'))
    NU=32; NFR=o['nfr']; FRB=[FR+4*k for k in range(8)]+[144,148,152,156,168,172,244,234]; S0=S[0]; P0=P[0]
    def perm(n,x,y): return I(f"v_permlane{n}_swap_b32 v{x}, v{y}",'perm',[x,y],[x,y])
    def xred(op,regs,tmps):
        r=[]
        for n in (16,32): r+=[V("v_mov_b32",t,x) for x,t in zip(regs,tmps)]+[perm(n,x,t) for x,t in zip(regs,tmps)]+[V(op,x,x,t) for x,t in zip(regs,tmps)]
        return r
    def bias(U): return HB if (NR>8 and U%NR>=NR//2) else 0
    def rebias(regs,U):
        d=bias(U)-bias(U-1) if U>0 else 0
        return [V("v_add_u32" if d>0 else "v_subrev_u32",x,str(abs(d)),x) for x in regs] if d else []
    def kread(U,s): ad=KAD+s%4; fb=FRB[s]; return I(f"ds_read_b128 {vr(fb,4)}, v{ad} offset:{(U%NR)*8192-bias(U)+(s//4)*4096}",'ds',R(fb,4),[ad])
    def vfb(j): return FRB[(8+j)%NFR]
    def vread(U,j,u2): fb=vfb(j)+2*u2; return I(f"ds_read_b64_tr_b16 {vr(fb,2)}, v{VAD+j} offset:{(U%NR)*8192-bias(U)+u2*4096}",'ds',R(fb,2),[VAD+j])
    bs=[U for U in range(-1,NU-1) if U<o['early'] or (U-o['early'])%o['per']==o['per']-1]
    def nvp(X): return o['nvpre'] if 3<=X<NU-1 else 0
    def nkm(X): return o['nkm'] if 3<=X<NU else 0
    def bwait(U):
        nx=[x for x in bs if x>U]; U2=nx[0] if nx else NU
        return {('K',x) for x in range(U+2 if U>=0 else 0,min(U2+2,NU))}|{('V',x) for x in range(NU) if U<=(x-1 if nvp(x) else x)<U2}
    def cbar(U,grp):
        if grp=='B': U+=LAG
        return only(grp,[I("s_barrier",'other',wait=bwait(U))]) if U in bs else []
    extra={U:[] for U in range(-1,NU+1)}
    mextra={U:[] for U in range(-1,NU+2)}
    vextra={U:[] for U in range(-1,NU+1)}
    preiss=set(issued); mainiss=[]
    for U in range(0,NU):
        b=max(x for x in bs if x<=U-1)
        todo=sorted([(X-1 if kd=='K' else X+0.5,kd,X) for X in range(NU) for kd in 'KV' if (kd,X) not in issued and X-NR<=max((b if kd=='K' else b-1)-LAG,-1)])
        for _,kd,X in todo[:(o['dma_e'] if U<o['dma_en'] else o['dma_s'])]: issued.add((kd,X)); mainiss.append((kd,X,U)); (mextra if o['dmam'] else extra)[U+o['dmam']].append(dma2(kd,X) if not (o['nodma'] and X>=8) else [I("s_nop 0",'dma',tag=(kd,X))])
    assert len(issued)==2*NU
    if LAG and o['shift']:
        Bhave=set(preiss)|{(kd,X+LAG) for kd,X,U in mainiss}
        for kd,X in sorted([(kd,X) for kd in 'KV' for X in range(NU) if (kd,X) not in Bhave],key=lambda z:z[1]-1 if z[0]=='K' else z[1]+0.5): assert X<NR; bl+=dma(kd,X)
        for kd,X,U in mainiss:
            b2=max(x for x in bs if x<=U+LAG); assert X+LAG-NR<=max((b2 if kd=='K' else b2-1)-LAG,-1),(kd,X,U)
    for j in range(4): extra[o['qn0']+(o['qn1']-o['qn0'])*j//4].append([qload(1,QORD[2*j]),qload(1,QORD[2*j+1])])
    for j,s in enumerate(QORD if o['qbp']&2 else []): extra[o['qf0']+(16-o['qf0'])*j//8].append(qfix(QB,s))
    if o['presc']:
        for j,s in enumerate(QORD): vextra[o['ps0']+(16-o['ps0'])*j//8]+=presc(1,s)
    nts=POL[o['nt_st']]
    def fin(p):
        l0,l1=LA if o['msum'] else L[p]
        thr=V("v_mov_b32",231,f"0x{f2u(2.0**(-1 if o['force_slow'] else 30)):08x}")
        r=[] if o['msum'] else xred("v_add_f32",[l0,l1],[l0+1,l1+1])
        return r+[trans(f"v_rcp_f32 v{RI[0]}, v{l0}",[RI[0]],[l0]),trans(f"v_rcp_f32 v{RI[1]}, v{l1}",[RI[1]],[l1]),thr,V("v_add_f32",233,l0,l1),V("v_add_f32",233,233,RI[0]),V("v_add_f32",233,233,RI[1]),
                  valu(f"v_cmp_nlt_f32 s[{sFLAG+2*p}:{sFLAG+2*p+1}], v{233}, v{231}",[],[233,231])]
    def conv(p,d,pk):
        X=(QA,QB)[p]; cv=[]; pend=None
        for k in range(8):
            r=O+16*d+2*k; qb=(k//2)%2; ri=RI[qb]; x=X+8*d+4*qb+2*(k//4)+k%2
            if pk: cv.append(valu(f"v_pk_mul_f32 {vr(r,2)}, {vr(r,2)}, {vr(ri,2)} op_sel_hi:[1,0]",[r,r+1],[r,r+1,ri]))
            else: cv+=[V("v_mul_f32",r,r,ri),V("v_mul_f32",r+1,r+1,ri)]
            if pend: cv.append(pend)
            pend=V("v_cvt_pk_bf16_f32",x,r,r+1)
        return cv+[pend]
    def store(p,d,g):
        x=(QA,QB)[p]+8*d+4*g
        if o['hackst']: return [V("v_and_b32",T,"0xffffe000",QO[p]),valu(f"v_mbcnt_lo_u32_b32 v{T+1}, -1, 0",[T+1],[]),valu(f"v_mbcnt_hi_u32_b32 v{T+1}, -1, v{T+1}",[T+1],[T+1]),V("v_lshl_add_u32",T,T+1,"4",T),V("v_add_u32",T,str((2*d+g)*1024),T),
            I(f"buffer_store_dwordx4 {vr(x,4)}, v{T}, s[{sO[p]}:{sO[p]+3}], 0 offen{nts}",'vst',[],R(x,4)+[T],tag=('O',p))]
        return [perm(16,x,x+2),perm(16,x+1,x+3)]+[bperm(x+k,IS) for k in range(4 if o['sbp']>>p&1 else 0)]+[I(f"buffer_store_dwordx4 {vr(x,4)}, v{(QO if o['sbp']>>p&1 else QD)[p]}, s[{sO[p]}:{sO[p]+3}], 0 offen offset:{d*64+256*g}{nts}",'vst',[],R(x,4)+[QO[p],QD[p]],tag=('O',p))]
    def store2(p,e,qb,X=None,pol=None):
        X=(QA,QB)[p] if X is None else X; A=X+16*e+4*qb; B=A+8; pol=nts if pol is None else pol
        r=[perm(16,A,A+2),perm(16,A+1,A+3),perm(16,B,B+2),perm(16,B+1,B+3)]+[V("v_mov_b32",T+k,B+k) for k in range(4)]
        r+=[I(f"v_mov_b32_dpp v{B+k}, v{A+k} row_shl:4 row_mask:0xf bank_mask:0x5",'perm',[B+k],[A+k,B+k]) for k in range(4)]
        r+=[I(f"v_mov_b32_dpp v{A+k}, v{T+k} row_shr:4 row_mask:0xf bank_mask:0xa",'perm',[A+k],[T+k,A+k]) for k in range(4)]
        st=[I(f"buffer_store_dwordx4 {vr(x,4)}, v{SO[p]}, s[{sO[p]}:{sO[p]+3}], 0 offen offset:{128*e+256*qb+2048*i}{pol}",'vst',[],R(x,4)+[SO[p]],tag=('O',p)) for i,x in ((1,B),(0,A))]
        return r,st
    for j in range(4 if o['dppst'] else 0):
        r,st=store2(0,j//2,j%2); w=o['st1']-o['st0']
        vextra[o['st0']+w*(2*j)//8]+=r+st[:1]; vextra[o['st0']+w*(2*j+1)//8]+=st[1:]
    for j in range(0 if o['dppst'] else 8):
        if o['stpair']: vextra[o['st0']+(o['st1']-o['st0'])*(j//2)//4]+=store(0,(j//4)*2+j%2,(j//2)%2)
        else:
            z=store(0,(j//4)*2+j%2,(j//2)%2); u=o['st0']+(o['st1']-o['st0'])*j//8; vextra[u]+=z[:-1]; extra[u+1].append(z[-1:])
    body=(only('A',[x for s in QORD for x in presc(0,s)]) if o['presc'] and o['apre'] else [])+[I("s_barrier",'other',wait=bwait(-1))]+[kread(0,s) for s in range(8)]
    if LAG:
        qb_=[] if o['bq0'] else [qload(0,s) for s in QORD]
        for U in range(-LAG,0):
            if o['qsplit']:
                if U+LAG==0: body+=only('B',qb_[:o['qsplit']])
                if U+LAG==1: body+=only('B',qb_[o['qsplit']:]+bl if o['bqfirst'] else bl+qb_[o['qsplit']:])
            elif U+LAG==o['bqpos']: body+=only('B',qb_+bl if o['bqfirst'] else bl+qb_)
            if U<-1: body+=cbar(U,'B')
        if not (o['qbp']&1 or o['presc']): body+=cbar(-1,'B')
        if o['bq0']!=2 or bl: body+=only('A',[I("s_nop 0",'other',u=R(QA,32))])+only('B',[I("s_nop 0",'other',u=R(QA,32))])
    if o['presc']:
        assert NFR==14 and not o['qbp']
        pl=[x for s in QORD for x in presc(0,s)]; body+=only('B',pl) if o['apre'] else pl
        if LAG: body+=cbar(-1,'B')
    if o['qbp']&1:
        for s in QORD: body+=qfix(QA,s)
        if LAG: body+=cbar(-1,'B')
    fpend=[]
    def fmx(k): return [valu(f"v_fma_f32 v{r}, v{r}, s{sC}, -v{MC[k//4]}",[r],[r,MC[k//4]]) for r in (S0+2*k,S0+2*k+1)]
    for U in range(NU+1):
        if o['stamps']==4:
            if U in (22,23,24): body+=stamp()
        elif o['stamps'] and U in ([0,1,5,9,13,17,21,25,29,32] if o['stamps']==1 else [0,1,5] if o['stamps']==2 else [0,1,9,17,25,32]): body+=stamp()
        body.append(I(f"s_setprio {o['pm1']}",'other',wait={'LGALL'} if o['lg0'] else None))
        ms=[]; rd=[vread(U-1,j,u2) if j>=nvp(U-1) else None for j in range(8) for u2 in range(2)] if U>=1 else []
        npre_v=0
        if U<NU:
            q=(QA,QB)[U//16]
            for s in range(8):
                kt,ds=s//4,s%4
                for qb in range(2): dd=S0+8*qb+4*kt; ms.append(mfma16(dd,FRB[s],q+4*(2*ds+qb),(CI[qb] if o['presc'] and U%16>=1 else None) if ds==0 else dd))
        else: rd=[]
        mx=[]
        if U==17 and o['cvspill']: mx=conv(0,3,0)
        for i,m in enumerate(ms):
            body.append(m)
            if i==o['pswitch']: body.append(raw(f"s_setprio {o['pm2']}"))
            if rd and rd[i]: body.append(rd[i])
            if mx: body+=mx[i*len(mx)//16:(i+1)*len(mx)//16]
        if U>=1:
            first=(U-1)%16==0
            if o['msum']: body+=[mfma16(LA[qb],ONE,P0+4*qb,None if first else LA[qb]) for qb in range(2)]
            if o['pvord']:
                for qb in range(2):
                    for j in range(8): dd=O+8*j+4*qb; body.append(mfma16(dd,vfb(j),P0+4*qb,None if first else dd))
            for j in range(0 if o['pvord'] else 8):
                for qb in range(2): dd=O+8*j+4*qb; body.append(mfma16(dd,vfb(j),P0+4*qb,None if first else dd))
                jj=j if NFR==16 else j+1
                if U+1<NU and 8-nkm(U+1)<=jj<8: body.append(kread(U+1,jj))
                if U<NU and U%16 and j<o['nfm']:
                    f2=fmx(j); body.insert(len(body)-(2 if body[-1].k=='ds' else 1),f2[0]); body.append(f2[1])
                if j%2==1 and j//2<len(mextra[U]): body+=mextra[U][j//2]
                if U==NU and o['fint']:
                    if j==1 and o['msum']: body+=fin(1)
                    if j in (3,5,7):
                        d=(j-3)//2; z0,z1=store(1,d,0),store(1,d,1); body+=conv(1,d,1)+fpend+z0[:-1]+z1[:-1]; fpend=z0[-1:]+z1[-1:]
        body.append(raw(f"s_setprio {o['pv']}"))
        if o['stamps']==4 and U in (22,23): body+=stamp()
        body+=cbar(U,'B')
        if o['stamps']==4 and U in (22,23): body+=stamp()
        if U==NU: break
        s=S0; p=U//16; lst=(rebias(R(KAD,4),U+1) if U+1<NU and not o['nkm'] else [])+rebias(R(VAD,8),U)
        if U%16==0:
            for k in (0,3,5): lst+=[V("v_max3_f32",P0+i,*( [s+8*i,s+8*i+1,s+8*i+2] if k==0 else [P0+i,s+8*i+k,s+8*i+k+1])) for i in range(2)]
            lst+=[V("v_max_f32",P0+i,P0+i,s+8*i+7) for i in range(2)]+xred("v_max_f32",[P0,P0+1],[P0+2,P0+3])
            lst+=[V("v_sub_f32",CI[i]+k,"0",P0+i) for k in range(4) for i in range(2)] if o['presc'] else [V("v_mul_f32",MC[i],f"s{sC}",P0+i) for i in range(2)]
        def fm(k):
            if U%16 and k<o['nfm']: return []
            if o['presc']: return [V("v_add_f32",r,r,CI[k//4]) for r in (s+2*k,s+2*k+1)] if U%16==0 else []
            return [valu(f"v_fma_f32 v{r}, v{r}, s{sC}, -v{MC[k//4]}",[r],[r,MC[k//4]]) for r in (s+2*k,s+2*k+1)]
        def ex(r): return [trans(f"v_exp_f32 v{r}, v{r}",[r],[r])]
        def ad(k): la=L[p][k//4]; return [] if o['msum'] or o['dsum'] else [V("v_add_f32",la,la,s+2*k),V("v_add_f32",la+1,la+1,s+2*k+1)]
        def cvt(k): return [V("v_cvt_pk_bf16_f32",P0+k,s+2*k,s+2*k+1)]
        def dot(k): la=L[p][k//4]+k%2; return [I(f"v_dot2c_f32_bf16 v{la}, s{sFLAG+4}, v{P0+k}",'dot',[la],[la,P0+k])] if o['dsum'] else []
        units=[fm(0)]
        for k in range(8):
            units+=[ex(s+2*k), fm(k+1) if k<7 else [], ex(s+2*k+1)]
            if k>0: units.append(ad(k-1))
            if k%2==0 and k>0: units.append(cvt(k-2)+cvt(k-1))
            if k%2==1 and k>1: units.append(dot(k-3)+dot(k-2))
        units+=[ad(7),cvt(6)+cvt(7),dot(6)+dot(7)]
        units=[u for u in units if u]
        side=([[kread(U+1,k)] for k in range(8-nkm(U+1))]+[[vread(U,j,u2)] for j in range(nvp(U)) for u2 in range(2)] if U+1<NU else [[vread(U,j,u2)] for j in range(8) for u2 in range(2)])
        ex_=extra[U]; sidem=[]
        for k in range(max(len(side),len(ex_))):
            if k<len(ex_): sidem.append(ex_[k])
            if k<len(side): sidem.append(side[k])
        nu=len(units)-o['sidetail']
        for k,u in enumerate(units):
            lst+=u
            if k<nu:
                for z in sidem[k*len(sidem)//nu:(k+1)*len(sidem)//nu]: lst+=z
        if U%16==15 and not o['msum']: lst+=[V("v_add_f32",x,x,x+1) for x in L[p]]+fin(p)
        if U==16:
            pr=fin(0) if o['msum'] else []
            for d in range(3 if o['cvspill'] else 4): pr+=conv(0,d,o['pkcv'])
            lst=lst+pr
        body+=lst+vextra[U]+(rebias(R(KAD,4),U+2) if U+2<NU and o['nkm'] else [])
        if o['stamps']==4 and U in (22,23): body+=stamp()
        body+=cbar(U,'A')
    if o['msum'] and not o['fint']: body+=fin(1)
    if o['dppst']:
        for e in range(2):
            body+=conv(1,2*e,1)+conv(1,2*e+1,1)
            for qb in range(2): r,st=store2(1,e,qb); body+=r+st
    elif o['stpair']:
        for d in (0,2): body+=conv(1,d,1)+conv(1,d+1,1)+store(1,d,0)+store(1,d+1,0)+store(1,d,1)+store(1,d+1,1)
    else:
        pend=fpend
        for d in range(3 if o['fint'] else 0,4):
            z0,z1=store(1,d,0),store(1,d,1); body+=conv(1,d,1)+pend+z0[:-1]+z1[:-1]; pend=z0[-1:]+z1[-1:]
        body+=pend
    post=[]
    if o['stamps']==3:
        post+=stamp(); post.append(I("s_nop 0",'other',wait={'VMALL'})); post+=stamp()
        post+=[raw("s_waitcnt lgkmcnt(0)"), salu(f"s_add_u32 s3, s2, s{sW}"), salu("s_cmp_lg_u32 s3, 133"), raw("s_cbranch_scc1 L_end"),
               salu("s_mov_b32 s8, s4"),salu("s_mov_b32 s9, s5"),salu("s_mov_b32 s10, 256"),salu("s_mov_b32 s11, 0x20000"), V("v_mov_b32",T,"0"), raw("s_mov_b64 exec, 1")]
        for j in range(1,len(stl)):
            post+=[salu(f"s_sub_u32 s3, s{50+4*j}, s50"),salu(f"s_sub_u32 s6, s{52+4*j}, s52"),V("v_mov_b32",T+2,"s3"),V("v_mov_b32",T+3,"s6"),
                   I(f"buffer_store_dwordx2 {vr(T+2,2)}, v{T}, s[8:11], 0 offen offset:{8*(j-1)}",'vst',[],[T,T+2,T+3])]
    elif o['stamps']:
        post+=stamp(); post.append(I("s_nop 0",'other',wait={'VMALL'})); post+=stamp()
        post+= [raw("s_waitcnt lgkmcnt(0)"), salu("s_mov_b32 s8, s4"),salu("s_mov_b32 s9, s5"),salu("s_mov_b32 s10, 0x100000"),salu("s_mov_b32 s11, 0x20000"),
                salu("s_lshl_b32 s3, s2, 11"), salu(f"s_lshr_b32 s6, s{sW}, 2"), salu("s_add_u32 s3, s3, s6"), V("v_mov_b32",T,"s3"), raw("s_mov_b64 exec, 1")]
        for j in range(2*len(stl)):
            post+=[V("v_mov_b32",T+2,f"s{50+2*j}"),V("v_mov_b32",T+3,f"s{51+2*j}"), I(f"buffer_store_dwordx2 {vr(T+2,2)}, v{T}, s[8:11], 0 offen offset:{8*j}",'vst',[],[T,T+2,T+3])]
        post.append(raw("s_mov_b64 exec, -1"))
    slow=[]
    if o['slow'] and not o['stamps']:
        from slowpath import slowpath
        slow=slowpath(locals())
    ins=insert_waits(pre+body+post+slow)
    ins,nn=fix_hazards(ins,verbose=o['verbose'])
    txt=[x.t if x.k=='label' else "    "+x.t for x in ins if x.t]
    hdr=open('cdna_kernels/%s.s.ref'%NAME).read().split('; Override')[0]
    out=hdr+f"; @launch grid=(256,1,1) block=(512,1,1) lds={2*VB}\n.amdgcn_target \"amdgcn-amd-amdhsa--gfx950\"\n.text\n.globl {NAME}_kernel\n.p2align 8\n.type {NAME}_kernel,@function\n{NAME}_kernel:\n"
    out+="\n".join(txt)+"\nL_end:\n    s_endpgm\n"
    out+=f""".section .rodata,"a"
.p2align 6
.amdhsa_kernel {NAME}_kernel
  .amdhsa_next_free_vgpr 256
  .amdhsa_next_free_sgpr 102
  .amdhsa_accum_offset 256
  .amdhsa_group_segment_fixed_size 0
  .amdhsa_kernarg_size 48
  .amdhsa_user_sgpr_count 2
  .amdhsa_user_sgpr_kernarg_segment_ptr 1
  .amdhsa_system_sgpr_workgroup_id_x 1
.end_amdhsa_kernel
"""
    return out,len(ins),nn
if __name__=="__main__":
    path=sys.argv[1]; kw={}
    for s in sys.argv[2:]:
        k,v=s.split('='); kw[k]=float(v) if '.' in v else int(v)
    out,n,nn=gen(**kw); open(path,'w').write(out); print(path,"insts",n,"nops",nn)
```
